```python
import torch

def _softmax(x, axis=-1):
    return torch.softmax(x, dim=axis)
def _gelu(x):
    return torch.nn.functional.gelu(x, approximate="tanh")
def _silu(x):
    return torch.nn.functional.silu(x)
def _sigmoid(x):
    return torch.sigmoid(x)
def _layernorm(x, axis=-1, eps=1e-5):
    m = x.mean(dim=axis, keepdim=True)
    v = x.var(dim=axis, keepdim=True, unbiased=False)
    return (x - m) / torch.sqrt(v + eps)
def _scatter_add(tgt, idx, src, axis=0):
    return tgt.clone().index_add_(axis, idx, src)
def _segment_sum(src, seg, n):
    out = torch.zeros((n,) + src.shape[1:], dtype=src.dtype)
    return out.index_add_(0, seg, src)
def _pad(x, pw):
    flat = tuple(v for pair in reversed(pw) for v in pair)
    return torch.nn.functional.pad(x, flat)

kernel_name = 'recurrent_scan__ssm_conv_s4__dense_activation_silu__prompt'

def setup_inputs():

    _w = (lambda a: (lambda t: t.to(torch.bfloat16) if t.is_floating_point() else t)(torch.as_tensor(a)))
    def _A_setup():
        B, L, D, N = 1, 2048, 512, 128
        A_re = -(lambda _x: torch.exp(torch.as_tensor(_x)))((lambda *s: torch.randn(*s, dtype=torch.bfloat16) * 3.2)(D, N))
        A_im = torch.pi * (lambda *s: torch.randn(*s, dtype=torch.bfloat16) * 0.2)(D, N)
        B_re = (lambda *s: torch.randn(*s, dtype=torch.bfloat16) * 0.2)(D, N)
        B_im = (lambda *s: torch.randn(*s, dtype=torch.bfloat16) * 0.2)(D, N)
        C_re = (lambda *s: torch.randn(*s, dtype=torch.bfloat16) * 0.2)(D, N)
        C_im = (lambda *s: torch.randn(*s, dtype=torch.bfloat16) * 0.2)(D, N)
        log_dt = (lambda *s: torch.randn(*s, dtype=torch.bfloat16) * 0.2)(D) * 0.5 - 4.0
        Dskip = (lambda *s: torch.randn(*s, dtype=torch.bfloat16) * 0.2)(D)
        return {
            "u": _w((lambda *s: torch.randn(*s, dtype=torch.bfloat16) * 0.05)(B, L, D)),
            "A_re": _w(A_re),
            "A_im": _w(A_im),
            "B_re": _w(B_re),
            "B_im": _w(B_im),
            "C_re": _w(C_re),
            "C_im": _w(C_im),
            "log_dt": _w(log_dt),
            "Dskip": _w(Dskip),
        }
    _A_in = _A_setup()

    def _B_setup():
        B, S, D, F = 1, 2048, 512, 1792
        return {
            "x": _w((lambda *s: torch.randn(*s, dtype=torch.bfloat16) * 0.05)(B, S, D)),
            "w1": _w((lambda *s: torch.randn(*s, dtype=torch.bfloat16) * 0.8)(D, F) * (D ** -0.5)),
            "w2": _w((lambda *s: torch.randn(*s, dtype=torch.bfloat16) * 0.1)(F, D) * (F ** -0.5)),
        }
    _B_in = _B_setup()

    return {
        "A_u": _A_in["u"],
        "A_A_re": _A_in["A_re"],
        "A_A_im": _A_in["A_im"],
        "A_B_re": _A_in["B_re"],
        "A_B_im": _A_in["B_im"],
        "A_C_re": _A_in["C_re"],
        "A_C_im": _A_in["C_im"],
        "A_log_dt": _A_in["log_dt"],
        "A_Dskip": _A_in["Dskip"],
        "B_x": _B_in["x"],
        "B_w1": _B_in["w1"],
        "B_w2": _B_in["w2"],
    }

def reference(A_u, A_A_re, A_A_im, A_B_re, A_B_im, A_C_re, A_C_im, A_log_dt, A_Dskip, B_x, B_w1, B_w2):
    def _A_ref(u, A_re, A_im, B_re, B_im, C_re, C_im, log_dt, Dskip):
        Bsz, L, D = u.shape
        dt = torch.exp(log_dt)[:, None]
        A = A_re + 1j * A_im
        Bc = B_re + 1j * B_im
        Cc = C_re + 1j * C_im
        logdA = dt * A
        dB = dt * Bc
        l = (lambda x, dt: x.to(dt))(torch.arange(L), A_re.dtype)
        P = torch.exp(logdA[:, :, None] * l[None, None, :])
        K = torch.einsum("dn,dnl,dn->dl", Cc, P, dB).real
        L2 = 2 * L
        Kp = _pad(K, ((0, 0), (0, L)))
        up = (lambda x, *d: x.permute(*d))(u, 0, 2, 1)
        up = _pad(up, ((0, 0), (0, 0), (0, L)))
        Kf = (lambda x, axes=(-2,-1): torch.fft.rfft2(x.float(), dim=axes))(Kp[:, None, :], axes=(-2, -1))
        Uf = (lambda x, axes=(-2,-1): torch.fft.rfft2(x.float(), dim=axes))(up[:, :, None, :], axes=(-2, -1))
        Yf = Uf * Kf[None, :, :, :]
        y = (lambda x, s, axes=(-2,-1): torch.fft.irfft2(x, s=s, dim=axes).to(torch.bfloat16))(Yf, (1, L2), axes=(-2, -1))[:, :, 0, :L]
        y = (lambda x, *d: x.permute(*d))(y, 0, 2, 1) + u * Dskip[None, None, :]
        return y

    def _B_ref(x, w1, w2):
        h = torch.einsum("bsd,df->bsf", x, w1)
        h = _silu(h)
        out = torch.einsum("bsf,fd->bsd", h, w2)
        return out

    x = A_u
    xn = _layernorm(x, axis=-1)
    s = _A_ref(xn, A_A_re, A_A_im, A_B_re, A_B_im, A_C_re, A_C_im, A_log_dt, A_Dskip)
    g = _silu(_B_ref(xn, B_w1, B_w2))
    return x + s * g
```

```python
import re

REG_RE = re.compile(r'^(-|\|)?(abs\()?(v|a|s)(\d+)\)?\|?$')
RNG_RE = re.compile(r'^(-)?(v|a|s)\[(\d+):(\d+)\]$')
TRANS = ('v_exp_f32', 'v_log_f32', 'v_rcp_f32', 'v_rsq_f32', 'v_sqrt_f32', 'v_sin_f32', 'v_cos_f32',
         'v_exp_f16', 'v_rcp_iflag_f32')

def regs_of(tok):
    tok = tok.strip()
    m = REG_RE.match(tok)
    if m: return [(m.group(3), int(m.group(4)))]
    m = RNG_RE.match(tok)
    if m: return [(m.group(2), i) for i in range(int(m.group(3)), int(m.group(4)) + 1)]
    if tok in ('vcc',): return [('vcc', 0)]
    if tok in ('vcc_lo', 'vcc_hi'): return [('vcc', 0)]
    if tok in ('exec', 'exec_lo', 'exec_hi'): return [('exec', 0)]
    if tok == 'm0': return [('m0', 0)]
    return []

class Ins:
    __slots__ = ('text', 'op', 'rd', 'wr', 'kind', 'passes', 'flags', 'ops')
    def __init__(self, text):
        self.text = text
        t = text.split(';')[0].strip()
        parts = t.split(None, 1)
        self.op = op = parts[0]
        rest = parts[1] if len(parts) > 1 else ''
        raw = [x.strip() for x in rest.split(',')] if rest else []
        ops = []; mods = []
        joined = rest
        joined = re.sub(r'\b(op_sel|op_sel_hi|neg_lo|neg_hi|quad_perm):\[[^\]]*\]', '', joined)
        raw = [x.strip() for x in joined.split(',')] if joined.strip() else []
        for i, x in enumerate(raw):
            w = x.split()
            if not w: continue
            ops.append(w[0]); mods += w[1:]
        self.ops = ops
        R = [regs_of(o) for o in ops]
        rd = []; wr = []; kind = 'other'; passes = 0; flags = set()
        dpp = ('_dpp' in op) or any(m.startswith(('row_', 'quad_perm', 'wave_')) for m in mods) or 'quad_perm' in rest
        if op.startswith('v_mfma'):
            kind = 'mfma'
            passes = 8 if '32x32x16' in op else 4 if '16x16x32' in op else None
            assert passes, op
            wr = R[0]; rd = R[1] + R[2] + R[3]
            self.flags = {'srcC': set(R[3]), 'srcAB': set(R[1] + R[2])}
        elif op.startswith('v_'):
            kind = 'valu'
            base = op.replace('_e32', '').replace('_e64', '').replace('_dpp', '').replace('_sdwa', '')
            if base in TRANS: flags.add('trans')
            if dpp: flags.add('dpp')
            if base.startswith('v_cmp'):
                wr = R[0]; rd = sum(R[1:], [])
            elif base in ('v_readlane_b32', 'v_readfirstlane_b32'):
                wr = R[0]; rd = sum(R[1:], []); flags.add('readlane')
            elif base == 'v_writelane_b32':
                wr = R[0]; rd = sum(R, []); flags.add('readlane')
            elif base in ('v_add_co_u32', 'v_sub_co_u32', 'v_subrev_co_u32', 'v_addc_co_u32', 'v_subb_co_u32'):
                wr = R[0] + R[1]; rd = sum(R[2:], [])
            elif base.startswith('v_permlane'):
                wr = R[0] + R[1]; rd = R[0] + R[1]; flags.add('permlane')
            elif base in ('v_fmac_f32', 'v_dot2c_f32_bf16', 'v_fmac_f16'):
                wr = R[0]; rd = sum(R, [])
            else:
                wr = R[0]; rd = sum(R[1:], [])
                if dpp: rd = rd + R[0]
            if base == 'v_cndmask_b32' and len(ops) == 3: rd = rd + [('vcc', 0)]
            rd = rd + [('exec', 0)]
        elif op.startswith('ds_'):
            kind = 'ds'
            if op.startswith(('ds_read', 'ds_bpermute', 'ds_permute', 'ds_swizzle')):
                wr = R[0]; rd = sum(R[1:], [])
            else:
                rd = sum(R, [])
        elif op.startswith(('buffer_', 'global_', 'flat_')):
            kind = 'vmem'
            islds = ('lds' in mods) or ('_lds_' in op)
            if op in ('buffer_wbl2', 'buffer_inv'):
                pass
            elif 'load' in op and not islds:
                wr = R[0]; rd = sum(R[1:], [])
            else:
                rd = sum(R, [])
                if islds: rd = rd + [('m0', 0)]; flags.add('ldsdma')
                if 'store' in op and ('x4' in op or 'x3' in op):
                    flags.add('widestore')
                    self.flags = None
                    data = R[0] if op.startswith('buffer_') else R[1]
                    flags.add(('data', tuple(data)))
            if 'atomic' in op and 'sc0' in mods:
                wr = R[0]
        elif op.startswith('s_'):
            kind = 'salu'
            if op.startswith(('s_cmp', 's_cbranch', 's_branch', 's_waitcnt', 's_barrier', 's_nop', 's_sleep',
                              's_setprio', 's_endpgm', 's_bitcmp')):
                rd = sum(R, [])
                if op.startswith('s_cbranch_vcc'): rd.append(('vcc', 0))
                if op.startswith('s_cbranch_exec'): rd.append(('exec', 0))
            elif 'saveexec' in op:
                wr = R[0] + [('exec', 0)]; rd = sum(R[1:], []) + [('exec', 0)]
            elif op.startswith(('s_load', 's_buffer_load', 's_memtime', 's_memrealtime')):
                kind = 'smem'; wr = R[0]; rd = sum(R[1:], [])
            else:
                wr = R[0] if R else []; rd = sum(R[1:], [])
        self.rd = set(rd); self.wr = set(wr); self.kind = kind; self.passes = passes
        if kind != 'mfma': self.flags = flags

def states(ins):
    if ins.op == 's_nop':
        return int(ins.ops[0], 0) + 1
    return 1

def need_dist(p, c):
    n = 0
    pw = p.wr
    if p.kind == 'valu':
        sg = {r for r in pw if r[0] in ('s', 'vcc')}
        vg = {r for r in pw if r[0] in ('v', 'a')}
        if sg:
            if c.kind == 'valu' and (sg & c.rd):
                n = max(n, 4 if 'readlane' in c.flags and False else 2)
                if 'readlane' in c.flags: n = max(n, 4)
            if c.kind == 'vmem' and (sg & c.rd): n = max(n, 5)
        if vg:
            if c.kind == 'valu':
                if 'readlane' in c.flags and (vg & c.rd): n = max(n, 1)
                if 'dpp' in c.flags and (vg & c.rd): n = max(n, 2)
                if 'permlane' in c.flags and (vg & c.rd): n = max(n, 2)
                if 'trans' in p.flags and 'trans' not in c.flags and (vg & c.rd): n = max(n, 1)
                if 'trans' in p.flags and 'trans' in c.flags and (vg & c.rd): n = max(n, 1)
            if c.kind == 'mfma' and (vg & c.rd): n = max(n, 2)
        if ('exec', 0) in pw:
            if c.kind == 'mfma': n = max(n, 4)
            if c.kind == 'valu' and 'dpp' in c.flags: n = max(n, 5)
    if p.kind == 'salu' and ('m0', 0) in pw and c.kind == 'vmem' and 'ldsdma' in c.flags:
        n = max(n, 1)
    if p.kind == 'vmem' and 'widestore' in p.flags:
        data = [f for f in p.flags if isinstance(f, tuple)][0][1]
        if set(data) & c.wr:
            n = max(n, 2 if c.kind == 'valu' else 1)
    if p.kind == 'mfma':
        D = p.wr; ps = p.passes
        if c.kind == 'mfma':
            cC = c.flags['srcC']; cAB = c.flags['srcAB']
            if D & cC:
                if D == cC and ps == c.passes: pass
                else: n = max(n, {4: 6, 8: 10}[ps])
            if D & cAB: n = max(n, {4: 8, 8: 12}[ps])
            if (D & c.wr) and not (D == c.wr and D == cC): n = max(n, {4: 6, 8: 10}[ps])
        elif c.kind in ('valu', 'vmem', 'ds'):
            if D & (c.rd | c.wr): n = max(n, {4: 8, 8: 12}[ps])
        if c.kind in ('valu', 'ds', 'vmem') and (p.flags['srcC'] & c.wr):
            n = max(n, {4: 3, 8: 7}[ps])
    return n

class G:
    def __init__(self):
        self.items = []
        self.vm = 0; self.vm_done = 0
        self.lg = 0; self.lg_done = 0
        self.nlab = 0
    def I(self, text):
        text = text.strip()
        ins = Ins(text)
        if ins.kind == 'ds' and self.lg - self.lg_done >= 15:
            self.wait_lg(self.lg - 11)
        if ins.kind == 'vmem' and self.vm - self.vm_done >= 62:
            self.wait_vm(self.vm - 55)
        self.items.append(ins)
        if ins.kind == 'vmem' and ins.op not in ('buffer_wbl2', 'buffer_inv'):
            self.vm += 1; return self.vm
        if ins.kind == 'vmem':
            self.vm += 1; return self.vm
        if ins.kind == 'ds':
            self.lg += 1; return self.lg
        return None
    def M(self, text):
        r = None
        for ln in text.strip().split('\n'):
            ln = ln.strip()
            if not ln or ln.startswith(';'): continue
            if ln.endswith(':'): self.L(ln[:-1])
            else: r = self.I(ln)
        return r
    def L(self, name): self.items.append(('label', name))
    def raw(self, text): self.items.append(('raw', text))
    def C(self, text): self.items.append(('raw', '; ' + text))
    def label(self, base):
        self.nlab += 1; return f"{base}_{self.nlab}"
    def wait_vm(self, t):
        if t is None or t <= self.vm_done: return
        n = self.vm - t
        if n <= 63:
            self.I(f"s_waitcnt vmcnt({n})"); self.vm_done = t
        else:
            self.I("s_waitcnt vmcnt(63)"); self.vm_done = max(self.vm_done, self.vm - 63)
            assert self.vm_done >= t
    def wait_lg(self, t):
        if t is None or t <= self.lg_done: return
        n = self.lg - t
        assert n >= 0
        if n <= 15:
            self.I(f"s_waitcnt lgkmcnt({n})"); self.lg_done = t
        else:
            self.I("s_waitcnt lgkmcnt(15)"); self.lg_done = self.lg - 15
            raise AssertionError("lgkm wait too deep")
    def wait_all(self):
        self.I("s_waitcnt vmcnt(0) lgkmcnt(0)"); self.vm_done = self.vm; self.lg_done = self.lg
    def wait_lg_all(self):
        self.I("s_waitcnt lgkmcnt(0)"); self.lg_done = self.lg
    def wait_vm_all(self):
        self.I("s_waitcnt vmcnt(0)"); self.vm_done = self.vm
    def barrier(self): self.I("s_barrier")
    def text(self):
        out = []
        hist = []
        WIN = 24
        def flush_for_cf():
            worst = 0
            for ins, age in hist:
                if ins.kind == 'mfma': w = {4: 8, 8: 12}[ins.passes]
                elif ins.kind == 'valu': w = 5
                elif ins.kind == 'vmem' and 'widestore' in ins.flags: w = 2
                elif ins.kind == 'salu' and ('m0', 0) in ins.wr: w = 1
                else: w = 0
                worst = max(worst, w - age)
            emit_nop(worst)
        def age_all(k):
            nonlocal hist
            hist = [(i, a + k) for (i, a) in hist if a + k < WIN]
        def emit_nop(n):
            while n > 0:
                k = min(n, 16)
                out.append(f"s_nop {k-1}"); age_all(k); n -= k
        for it in self.items:
            if isinstance(it, tuple):
                if it[0] == 'label':
                    flush_for_cf(); out.append(it[1] + ':'); hist = []
                else: out.append(it[1])
                continue
            ins = it
            if ins.op.startswith(('s_cbranch', 's_branch')):
                need = 0
                for p, age in hist: need = max(need, need_dist(p, ins) - age)
                emit_nop(need)
                flush_for_cf()
                out.append(ins.text); age_all(1); continue
            need = 0
            for p, age in hist: need = max(need, need_dist(p, ins) - age)
            emit_nop(need)
            out.append(ins.text)
            st = states(ins)
            age_all(st)
            hist.append((ins, 0))
        return '\n'.join(out) + '\n'

class RA:
    def __init__(self, kind, lo, hi):
        self.kind = kind; self.lo = lo; self.hi = hi; self.used = [False] * hi; self.maxused = lo
    def alloc(self, n=1, align=1):
        a = max(align, 1)
        i = self.lo
        while i + n <= self.hi:
            if i % a == 0 and not any(self.used[i:i + n]):
                for k in range(i, i + n): self.used[k] = True
                self.maxused = max(self.maxused, i + n)
                return i
            i += 1
        raise RuntimeError(f"out of {self.kind} regs (need {n})")
    def free(self, i, n=1):
        for k in range(i, i + n):
            assert self.used[k]; self.used[k] = False

def vr(i, n=1, k='v'):
    return f"{k}{i}" if n == 1 else f"{k}[{i}:{i+n-1}]"
def ar(i, n=1): return vr(i, n, 'a')
def sr(i, n=1): return vr(i, n, 's')
```

```python
import sys, math
sys.path.insert(0, "gen")
from asmgen import *

NAME = "recurrent_scan__ssm_conv_s4__dense_activation_silu__prompt_kernel"
WS_XN = 0
WS_ST = 2 << 20
WS_FLN = WS_ST + 0x8000
WS_FH = WS_FLN + 0x1000
WS_FS = WS_FH + 0x1000
WS_S = 3 << 20
WS_H = 5 << 20
WS_DBG = 13 << 20
WS_SIZE = 16 << 20
LOG2E = 1.4426950408889634
SPIN = 0x20000

def f2u(x):
    import struct
    return struct.unpack('<I', struct.pack('<f', x))[0]

class Kern:
    def __init__(self, stop=None, dbg=False):
        self.g = G()
        self.stop = stop
        self.dbg = dbg
        self.v = RA('v', 1, 256)
        self.a = RA('a', 0, 256)
        self.s = RA('s', 34, 100)

    def build(self):
        g = self.g; v = self.v; s = self.s
        I = g.I; M = g.M
        self.pX, self.pAre, self.pAim, self.pBre, self.pBim, self.pCre, self.pCim, self.pLdt = 4, 6, 8, 10, 12, 14, 16, 18
        self.pDsk, self.pBx, self.pW1, self.pW2 = 20, 22, 24, 26
        self.pOut, self.pDbg, self.pWs = 28, 30, 32
        self.rX = s.alloc(4, 4); self.rW1 = s.alloc(4, 4); self.rW2 = s.alloc(4, 4)
        self.rWS = s.alloc(4, 4); self.rOut = s.alloc(4, 4)
        self.sC = s.alloc(); self.sQ = s.alloc(); self.sI = s.alloc(); self.sJ = s.alloc(); self.sV = s.alloc()
        self.sNon = s.alloc(2, 2)
        self.sT = [s.alloc() for _ in range(8)]
        self.sP = s.alloc(2, 2); self.sP2 = s.alloc(2, 2)
        self.sEx = s.alloc(2, 2)
        self.vLane = v.alloc()
        self.prologue()
        self.ln_phase()
        if self.stop == 'ln': return self.finish()
        self.gemm1()
        if self.stop == 'g1': return self.finish()
        self.kgen()
        if self.stop == 'kg': return self.finish()
        self.conv()
        if self.stop == 'cv': return self.finish()
        self.gemm2()
        return self.finish()

    def finish(self):
        g = self.g
        g.wait_all()
        g.L("L_end")
        return g.text()

    def prologue(self):
        g = self.g; I = g.I; M = g.M; v = self.v
        sC, sQ, sI, sJ, sV = self.sC, self.sQ, self.sI, self.sJ, self.sV
        T = self.sT
        vt = v.alloc()
        M(f"""
        s_cmp_ge_u32 s2, 256
        s_cbranch_scc1 L_end
        s_load_dwordx16 s[4:19], s[0:1], 0
        s_load_dwordx8 s[20:27], s[0:1], 64
        s_load_dwordx4 s[28:31], s[0:1], 96
        s_load_dwordx2 s[32:33], s[0:1], 112
        s_and_b32 s{sC}, s2, 7
        s_lshr_b32 s{sQ}, s2, 3
        s_and_b32 s{T[0]}, s{sQ}, 1
        s_lshl_b32 s{sI}, s{sC}, 1
        s_add_u32 s{sI}, s{sI}, s{T[0]}
        s_lshr_b32 s{sJ}, s{sQ}, 1
        v_and_b32 v{self.vLane}, 63, v0
        v_lshrrev_b32 v{vt}, 6, v0
        v_readfirstlane_b32 s{sV}, v{vt}
        """)
        v.free(vt)
        L = self.vLane
        self.vL16 = v.alloc()
        self.vXo = [v.alloc(), v.alloc()]
        self.vWo = v.alloc()
        t0 = v.alloc(); t1 = v.alloc(); t2 = v.alloc()
        M(f"""
        v_lshlrev_b32 v{self.vL16}, 4, v{L}
        v_lshrrev_b32 v{t0}, 3, v{L}
        v_lshlrev_b32 v{t0}, 10, v{t0}
        v_and_b32 v{t1}, 7, v{L}
        v_lshrrev_b32 v{t2}, 4, v{L}
        v_xor_b32 v{t1}, v{t1}, v{t2}
        v_lshlrev_b32 v{t1}, 4, v{t1}
        v_add_u32 v{self.vXo[0]}, v{t0}, v{t1}
        v_xor_b32 v{self.vXo[1]}, 64, v{self.vXo[0]}
        v_mul_u32_u24 v{t0}, 3584, v{t2}
        v_and_b32 v{t1}, 15, v{L}
        v_lshlrev_b32 v{t2}, 2, v{t2}
        v_xor_b32 v{t1}, v{t1}, v{t2}
        v_lshlrev_b32 v{t1}, 4, v{t1}
        v_add_u32 v{self.vWo}, v{t0}, v{t1}
        """)
        v.free(t0); v.free(t1); v.free(t2)
        I("s_waitcnt lgkmcnt(0)")
        for r, p, sz in ((self.rX, self.pX, 2 << 20), (self.rW1, self.pW1, 512 * 1792 * 2), (self.rW2, self.pW2, 512 * 1792 * 2),
                         (self.rWS, self.pWs, WS_SIZE), (self.rOut, self.pOut, 2 << 20)):
            M(f"""
            s_mov_b32 s{r}, s{p}
            s_and_b32 s{r+1}, s{p+1}, 0xffff
            s_mov_b32 s{r+2}, {sz}
            s_mov_b32 s{r+3}, 0x20000
            """)
        lab = g.label("L_non")
        tv = v.alloc(2, 2); ta = v.alloc()
        M(f"""
        s_or_b32 s{T[0]}, s2, s{sV}
        s_cmp_lg_u32 s{T[0]}, 0
        s_cbranch_scc1 {lab}
        s_memrealtime s[{self.sP}:{self.sP+1}]
        s_waitcnt lgkmcnt(0)
        s_or_b32 s{self.sP}, s{self.sP}, 1
        v_mov_b32 v{tv}, s{self.sP}
        v_mov_b32 v{tv+1}, s{self.sP+1}
        v_mov_b32 v{ta}, 0
        s_mov_b64 s[{self.sEx}:{self.sEx+1}], exec
        s_mov_b64 exec, 1
        """)
        g.raw(f"global_store_dwordx2 v{ta}, v[{tv}:{tv+1}], s[{self.pDbg}:{self.pDbg+1}] sc1")
        M(f"""
        s_mov_b64 exec, s[{self.sEx}:{self.sEx+1}]
        """)
        g.L(lab)
        v.free(tv, 2); v.free(ta)

    def dma_chunk(self, c):
        g = self.g; I = g.I; T = self.sT
        slot = (c % 4) * 32768
        t = None
        for u in range(4):
            I(f"s_add_u32 m0, s{self.sXlds}, {slot + u * 1024}")
            I(f"s_add_u32 s{T[0]}, s{self.sXsrc}, {u * 8192 + c * 128}")
            t = I(f"buffer_load_dwordx4 v{self.vXo[u & 1]}, s[{self.rX}:{self.rX+3}], s{T[0]} offen lds")
        for u in range(4):
            I(f"s_add_u32 m0, s{self.sXlds}, {slot + 16384 + u * 1024}")
            I(f"s_add_u32 s{T[0]}, s{self.sWsrc}, {(64 * c + 4 * u) * 3584}")
            t = I(f"buffer_load_dwordx4 v{self.vWo}, s[{self.rW1}:{self.rW1+3}], s{T[0]} offen lds")
        return t

    def nonce_issue(self):
        g = self.g; v = self.v
        self.vNon = v.alloc(2, 2); ta = v.alloc()
        g.I(f"v_mov_b32 v{ta}, 0")
        self.tk_non = g.I(f"global_load_dwordx2 v[{self.vNon}:{self.vNon+1}], v{ta}, s[{self.pDbg}:{self.pDbg+1}] sc1")
        self.vNonA = ta

    def nonce_check(self):
        g = self.g; v = self.v; M = g.M
        tv = self.vNon; ta = self.vNonA
        lp = g.label("L_np"); dn = g.label("L_nd")
        g.wait_vm(self.tk_non)
        M(f"""
        v_readfirstlane_b32 s{self.sNon}, v{tv}
        v_readfirstlane_b32 s{self.sNon+1}, v{tv+1}
        s_mov_b32 s{self.sT[1]}, 0
        s_cmp_lg_u32 s{self.sNon}, 0
        s_cbranch_scc1 {dn}
        """)
        g.L(lp)
        g.raw(f"global_load_dwordx2 v[{tv}:{tv+1}], v{ta}, s[{self.pDbg}:{self.pDbg+1}] sc1")
        M(f"""
        s_waitcnt vmcnt(0)
        v_readfirstlane_b32 s{self.sNon}, v{tv}
        v_readfirstlane_b32 s{self.sNon+1}, v{tv+1}
        s_add_u32 s{self.sT[1]}, s{self.sT[1]}, 1
        s_cmp_lg_u32 s{self.sNon}, 0
        s_cbranch_scc1 {dn}
        s_cmp_gt_u32 s{self.sT[1]}, {SPIN}
        s_cbranch_scc1 {dn}
        s_sleep 2
        s_branch {lp}
        """)
        g.L(dn)
        v.free(tv, 2); v.free(ta)

    def poll_issue(self, addr_v, n=1, stride=512):
        g = self.g; v = self.v
        regs = [v.alloc(2, 2) for _ in range(n)]
        t = None
        for k, r in enumerate(regs):
            t = g.I(f"buffer_load_dwordx2 v[{r}:{r+1}], v{addr_v}, s[{self.rWS}:{self.rWS+3}], 0 offen offset:{k*stride} sc1")
        return (regs, t, addr_v, stride)

    def poll_check(self, h, free_addr=True):
        g = self.g; v = self.v; M = g.M
        regs, t, addr_v, stride = h
        N = self.sNon; P = self.sP
        lp = g.label("L_pp"); dn = g.label("L_pd")
        def cmp():
            g.I(f"v_cmp_eq_u64 vcc, s[{N}:{N+1}], v[{regs[0]}:{regs[0]+1}]")
            for r in regs[1:]:
                g.I(f"v_cmp_eq_u64 s[{P}:{P+1}], s[{N}:{N+1}], v[{r}:{r+1}]")
                g.I(f"s_and_b64 vcc, vcc, s[{P}:{P+1}]")
            g.I("s_cmp_eq_u64 vcc, exec")
        g.wait_vm(t)
        cmp()
        g.I(f"s_mov_b32 s{self.sT[1]}, 0") if False else None
        g.I(f"s_cbranch_scc1 {dn}")
        g.I(f"s_mov_b32 s{self.sT[1]}, 0")
        g.L(lp)
        for k, r in enumerate(regs):
            g.raw(f"buffer_load_dwordx2 v[{r}:{r+1}], v{addr_v}, s[{self.rWS}:{self.rWS+3}], 0 offen offset:{k*stride} sc1")
        g.I("s_waitcnt vmcnt(0)")
        cmp()
        M(f"""
        s_cbranch_scc1 {dn}
        s_add_u32 s{self.sT[1]}, s{self.sT[1]}, 1
        s_cmp_gt_u32 s{self.sT[1]}, {SPIN}
        s_cbranch_scc1 {dn}
        s_sleep 1
        s_branch {lp}
        """)
        g.L(dn)
        for r in regs: v.free(r, 2)
        if free_addr: v.free(addr_v)

    def set_flag(self, off_sgpr_expr_base, idx_sgpr):
        g = self.g; v = self.v; M = g.M
        tv = v.alloc(2, 2); ta = v.alloc()
        lab = g.label("L_sf")
        M(f"""
        s_cmp_lg_u32 s{self.sV}, 0
        s_cbranch_scc1 {lab}
        s_lshl_b32 s{self.sT[1]}, s{idx_sgpr}, 3
        s_add_u32 s{self.sT[1]}, s{self.sT[1]}, {off_sgpr_expr_base}
        v_mov_b32 v{ta}, s{self.sT[1]}
        v_mov_b32 v{tv}, s{self.sNon}
        v_mov_b32 v{tv+1}, s{self.sNon+1}
        s_mov_b64 s[{self.sEx}:{self.sEx+1}], exec
        s_mov_b64 exec, 1
        """)
        g.raw(f"buffer_store_dwordx2 v[{tv}:{tv+1}], v{ta}, s[{self.rWS}:{self.rWS+3}], 0 offen sc1")
        M(f"""
        s_mov_b64 exec, s[{self.sEx}:{self.sEx+1}]
        """)
        g.L(lab)
        v.free(tv, 2); v.free(ta)

    def ln_phase(self):
        g = self.g; I = g.I; M = g.M; v = self.v; T = self.sT
        sI, sJ, sV = self.sI, self.sJ, self.sV
        LNX = 131072
        xa = v.alloc(4, 4); xb = v.alloc(4, 4)
        self.sLb = self.s.alloc()
        sRow = T[2]
        M(f"""
        s_lshl_b32 s{self.sLb}, s{sI}, 4
        s_add_u32 s{self.sLb}, s{self.sLb}, s{sJ}
        s_lshl_b32 s{sRow}, s{self.sLb}, 3
        s_lshl_b32 s{T[0]}, s{sV}, 1
        s_add_u32 s{sRow}, s{sRow}, s{T[0]}
        s_lshl_b32 s{T[0]}, s{sRow}, 10
        """)
        I(f"buffer_load_dwordx4 v[{xa}:{xa+3}], v{self.vL16}, s[{self.rX}:{self.rX+3}], s{T[0]} offen")
        tx = I(f"buffer_load_dwordx4 v[{xb}:{xb+3}], v{self.vL16}, s[{self.rX}:{self.rX+3}], s{T[0]} offen offset:1024")
        self.sXlds = self.s.alloc(); self.sXsrc = self.s.alloc(); self.sWsrc = self.s.alloc()
        M(f"""
        s_lshl_b32 s{self.sXlds}, s{sV}, 12
        s_lshl_b32 s{self.sXsrc}, s{sI}, 17
        s_lshl_b32 s{T[0]}, s{sV}, 15
        s_add_u32 s{self.sXsrc}, s{self.sXsrc}, s{T[0]}
        s_mul_i32 s{self.sWsrc}, s{sV}, {16 * 3584}
        s_lshl_b32 s{T[0]}, s{sJ}, 8
        s_add_u32 s{self.sWsrc}, s{self.sWsrc}, s{T[0]}
        """)
        self.tk_chunk = {}
        for c in range(4): self.tk_chunk[c] = self.dma_chunk(c)
        self.kg_params_issue()
        self.kg_expand_addr()
        g.wait_vm(tx)
        ones = T[3]
        I(f"s_mov_b32 s{ones}, 0x3f803f80")
        s1 = [v.alloc(), v.alloc()]; s2 = [v.alloc(), v.alloc()]
        X = [xa, xb]
        for r in range(2):
            I(f"v_dot2_f32_bf16 v{s1[r]}, v{X[r]}, s{ones}, 0")
            I(f"v_dot2_f32_bf16 v{s2[r]}, v{X[r]}, v{X[r]}, 0")
        for k in range(1, 4):
            for r in range(2):
                I(f"v_dot2_f32_bf16 v{s1[r]}, v{X[r]+k}, s{ones}, v{s1[r]}")
                I(f"v_dot2_f32_bf16 v{s2[r]}, v{X[r]+k}, v{X[r]+k}, v{s2[r]}")
        red = [s1[0], s2[0], s1[1], s2[1]]
        for mod in ("row_shr:1 row_mask:0xf bank_mask:0xf bound_ctrl:0", "row_shr:2 row_mask:0xf bank_mask:0xf bound_ctrl:0",
                    "row_shr:4 row_mask:0xf bank_mask:0xf bound_ctrl:0", "row_shr:8 row_mask:0xf bank_mask:0xf bound_ctrl:0",
                    "row_bcast:15 row_mask:0xa bank_mask:0xf", "row_bcast:31 row_mask:0xc bank_mask:0xf"):
            for r in red:
                I(f"v_add_f32_dpp v{r}, v{r}, v{r} {mod}")
        sm = [T[4], T[5], T[6], T[7]]
        for r, sg in zip(red, sm):
            I(f"v_readlane_b32 s{sg}, v{r}, 63")
        st = v.alloc(4, 4)
        mf = [v.alloc(), v.alloc()]
        tmp = v.alloc(); tmp2 = v.alloc()
        inv512 = f"0x{f2u(1.0/512):08x}"
        for r in range(2):
            M(f"""
            v_mov_b32 v{tmp}, s{sm[2*r]}
            v_mul_f32 v{tmp}, {inv512}, v{tmp}
            v_mov_b32 v{tmp2}, s{sm[2*r+1]}
            v_mul_f32 v{tmp2}, {inv512}, v{tmp2}
            v_fma_f32 v{tmp2}, -v{tmp}, v{tmp}, v{tmp2}
            v_max_f32 v{tmp2}, 0, v{tmp2}
            v_cvt_pk_bf16_f32 v{tmp}, v{tmp}, v{tmp}
            v_and_b32 v{mf[r]}, 0xffff0000, v{tmp}
            v_xor_b32 v{st+2*r}, 0x80008000, v{tmp}
            v_cvt_pk_bf16_f32 v{tmp2}, v{tmp2}, v{tmp2}
            v_and_b32 v{tmp2}, 0xffff0000, v{tmp2}
            v_add_f32 v{tmp2}, 0x{f2u(1e-5):08x}, v{tmp2}
            v_cvt_pk_bf16_f32 v{tmp2}, v{tmp2}, v{tmp2}
            v_and_b32 v{tmp2}, 0xffff0000, v{tmp2}
            v_sqrt_f32 v{tmp2}, v{tmp2}
            v_cvt_pk_bf16_f32 v{tmp2}, v{tmp2}, v{tmp2}
            v_and_b32 v{tmp2}, 0xffff0000, v{tmp2}
            v_rcp_f32 v{st+2*r+1}, v{tmp2}
            """)
        n = [v.alloc(8), v.alloc(8)]
        dp = v.alloc()
        for r in range(2):
            for k in range(4):
                lo = n[r] + 2 * k; hi = lo + 1
                M(f"""
                v_lshlrev_b32 v{lo}, 16, v{X[r]+k}
                v_and_b32 v{hi}, 0xffff0000, v{X[r]+k}
                v_sub_f32 v{lo}, v{lo}, v{mf[r]}
                v_sub_f32 v{hi}, v{hi}, v{mf[r]}
                v_cvt_pk_bf16_f32 v{dp}, v{lo}, v{hi}
                v_lshlrev_b32 v{lo}, 16, v{dp}
                v_and_b32 v{hi}, 0xffff0000, v{dp}
                v_mul_f32 v{lo}, v{lo}, v{st+2*r+1}
                v_mul_f32 v{hi}, v{hi}, v{st+2*r+1}
                """)
        wa = v.alloc()
        M(f"""
        s_lshl_b32 s{T[0]}, s{sV}, 2
        s_add_u32 s{T[0]}, s{T[0]}, {LNX}
        v_add_u32 v{wa}, s{T[0]}, v{self.vL16}
        """)
        for e in range(8):
            I(f"v_cvt_pk_bf16_f32 v{n[0]+e}, v{n[0]+e}, v{n[1]+e}")
            I(f"ds_write_b32 v{wa}, v{n[0]+e} offset:{e * 65 * 16}")
        ta = v.alloc()
        M(f"""
        s_lshl_b32 s{T[0]}, s{sRow}, 3
        s_add_u32 s{T[0]}, s{T[0]}, {WS_ST}
        v_mov_b32 v{ta}, s{T[0]}
        s_mov_b64 s[{self.sEx}:{self.sEx+1}], exec
        s_mov_b64 exec, 1
        """)
        I(f"buffer_store_dwordx4 v[{st}:{st+3}], v{ta}, s[{self.rWS}:{self.rWS+3}], 0 offen sc1")
        I(f"s_mov_b64 exec, s[{self.sEx}:{self.sEx+1}]")
        g.wait_lg_all()
        g.barrier()
        ra = v.alloc(); u0 = v.alloc(4, 4); u1 = v.alloc(4, 4); ga = v.alloc()
        M(f"""
        v_and_b32 v{ra}, 7, v0
        v_mul_u32_u24 v{ra}, 65, v{ra}
        v_lshrrev_b32 v{ga}, 3, v0
        v_add_u32 v{ra}, v{ra}, v{ga}
        v_lshlrev_b32 v{ra}, 4, v{ra}
        v_add_u32 v{ra}, {LNX}, v{ra}
        """)
        I(f"ds_read_b128 v[{u0}:{u0+3}], v{ra}")
        I(f"ds_read_b128 v[{u1}:{u1+3}], v{ra} offset:{32 * 16}")
        M(f"""
        v_lshlrev_b32 v{ga}, 4, v0
        s_lshl_b32 s{T[0]}, s{self.sLb}, 13
        """)
        g.wait_lg_all()
        I(f"buffer_store_dwordx4 v[{u0}:{u0+3}], v{ga}, s[{self.rWS}:{self.rWS+3}], s{T[0]} offen sc1")
        I(f"v_add_u32 v{ra}, 4096, v{ga}")
        self.tk_ln = I(f"buffer_store_dwordx4 v[{u1}:{u1+3}], v{ra}, s[{self.rWS}:{self.rWS+3}], s{T[0]} offen sc1")
        for r_, n_ in ((xa, 4), (xb, 4), (st, 4), (n[0], 8), (n[1], 8), (u0, 4), (u1, 4)): v.free(r_, n_)
        for r_ in s1 + s2 + mf + [tmp, tmp2, dp, wa, ta, ra, ga]: v.free(r_)
        if self.stop == 'ln':
            self.nonce_issue()
            g.wait_all(); g.barrier()
            self.nonce_check()
            self.set_flag(WS_FLN, self.sLb)

    def gemm1(self):
        g = self.g; I = g.I; M = g.M; v = self.v; T = self.sT; s = self.s
        L = self.vLane; sV = self.sV
        sWf = s.alloc(); sWl = s.alloc()
        self.sWf, self.sWl = sWf, sWl
        M(f"""
        s_lshr_b32 s{sWf}, s{sV}, 1
        s_and_b32 s{sWl}, s{sV}, 1
        """)
        vXa = [[v.alloc() for _ in range(4)] for _ in range(2)]
        vWa = [[v.alloc() for _ in range(2)] for _ in range(2)]
        t0 = v.alloc(); t1 = v.alloc(); t2 = v.alloc(); t3 = v.alloc()
        M(f"""
        v_and_b32 v{t0}, 31, v{L}
        v_lshrrev_b32 v{t1}, 1, v{t0}
        v_and_b32 v{t1}, 7, v{t1}
        v_lshrrev_b32 v{t2}, 5, v{L}
        v_xor_b32 v{t1}, v{t1}, v{t2}
        s_lshl_b32 s{T[0]}, s{sWl}, 13
        v_lshlrev_b32 v{t0}, 7, v{t0}
        v_add_u32 v{t0}, s{T[0]}, v{t0}
        """)
        for st in range(4):
            M(f"""
            v_xor_b32 v{t2}, {2*st}, v{t1}
            v_lshlrev_b32 v{t2}, 4, v{t2}
            v_add_u32 v{vXa[0][st]}, v{t0}, v{t2}
            v_add_u32 v{vXa[1][st]}, 0x10000, v{vXa[0][st]}
            """)
        M(f"""
        v_lshrrev_b32 v{t0}, 5, v{L}
        v_lshlrev_b32 v{t0}, 3, v{t0}
        v_lshrrev_b32 v{t1}, 2, v{L}
        v_and_b32 v{t1}, 3, v{t1}
        v_add_u32 v{t0}, v{t0}, v{t1}
        v_lshlrev_b32 v{t0}, 8, v{t0}
        v_lshrrev_b32 v{t2}, 4, v{L}
        v_and_b32 v{t2}, 1, v{t2}
        v_lshlrev_b32 v{t2}, 5, v{t2}
        v_add_u32 v{t0}, v{t0}, v{t2}
        v_and_b32 v{t2}, 3, v{L}
        v_lshlrev_b32 v{t2}, 3, v{t2}
        v_add_u32 v{t0}, v{t0}, v{t2}
        v_add_u32 v{t0}, 16384, v{t0}
        s_lshl_b32 s{T[0]}, s{sWf}, 1
        """)
        for ftl in range(2):
            M(f"""
            s_xor_b32 s{T[1]}, s{sWl}, {ftl}
            s_add_u32 s{T[1]}, s{T[0]}, s{T[1]}
            v_xor_b32 v{t2}, s{T[1]}, v{t1}
            v_lshlrev_b32 v{t2}, 6, v{t2}
            v_add_u32 v{vWa[0][ftl]}, v{t0}, v{t2}
            v_add_u32 v{vWa[1][ftl]}, 0x10000, v{vWa[0][ftl]}
            """)
        sel = v.alloc(4, 4)
        M(f"""
        v_and_b32 v{t0}, 15, v{L}
        v_lshrrev_b32 v{t1}, 4, v{L}
        v_and_b32 v{t1}, 1, v{t1}
        v_cmp_eq_u32 vcc, v{t0}, v{t1}
        v_mov_b32 v{t2}, 0x3f803f80
        v_cndmask_b32 v{sel}, 0, v{t2}, vcc
        v_mov_b32 v{sel+1}, v{sel}
        v_mov_b32 v{sel+2}, v{sel}
        v_mov_b32 v{sel+3}, v{sel}
        """)
        for r in (t0, t1, t2, t3): v.free(r)
        A = [[v.alloc(4, 4) for _ in range(2)] for _ in range(2)]
        B = [[v.alloc(4, 4) for _ in range(2)] for _ in range(2)]
        acc = [[v.alloc(16, 4) for _ in range(2)] for _ in range(2)]
        cs = v.alloc(4, 4)
        self.acc1 = acc

        def reads(c, st, buf):
            half = (c % 4) // 2; so = (c & 1) * 32768
            t = None
            for ftl in range(2):
                for hf in range(2):
                    a = A[buf][ftl] + 2 * hf
                    t = I(f"ds_read_b64_tr_b16 v[{a}:{a+1}], v{vWa[half][ftl]} offset:{so + (16*st + 4*hf) * 256}")
            for lt in range(2):
                b = B[buf][lt]
                t = I(f"ds_read_b128 v[{b}:{b+3}], v{vXa[half][st]} offset:{so + lt * 4096}")
            return t
        def mfmas(buf, first):
            for ftl in range(2):
                for lt in range(2):
                    d = acc[ftl][lt]
                    c_ = "0" if first else f"v[{d}:{d+15}]"
                    I(f"v_mfma_f32_32x32x16_bf16 v[{d}:{d+15}], v[{A[buf][ftl]}:{A[buf][ftl]+3}], v[{B[buf][lt]}:{B[buf][lt]+3}], {c_}")
        g.wait_vm(self.tk_chunk[0])
        g.barrier()
        tk = reads(0, 0, 0)
        buf = 0
        for c in range(8):
            for st in range(4):
                first = (c == 0 and st == 0)
                g.wait_lg(tk)
                if st < 3:
                    tk = reads(c, st + 1, buf ^ 1)
                elif c < 7:
                    g.wait_vm(self.tk_chunk[c + 1])
                    g.barrier()
                    if c + 4 < 8: self.tk_chunk[c + 4] = self.dma_chunk(c + 4)
                    if c == 1: self.nonce_issue()
                    if c == 3:
                        self.nonce_check()
                        self.set_flag(WS_FLN, self.sLb)
                    if c == 5:
                        fa = v.alloc()
                        M(f"""
                        v_and_b32 v{fa}, 15, v{L}
                        v_lshlrev_b32 v{fa}, 3, v{fa}
                        s_lshl_b32 s{T[0]}, s{self.sI}, 7
                        s_add_u32 s{T[0]}, s{T[0]}, {WS_FLN}
                        v_add_u32 v{fa}, s{T[0]}, v{fa}
                        """)
                        self.h_ln = self.poll_issue(fa)
                    tk = reads(c + 1, 0, buf ^ 1)
                mfmas(buf, first)
                c_ = "0" if first else f"v[{cs}:{cs+3}]"
                I(f"v_mfma_f32_16x16x32_bf16 v[{cs}:{cs+3}], v[{sel}:{sel+3}], v[{A[buf][0]}:{A[buf][0]+3}], {c_}")
                buf ^= 1
        self.poll_check(self.h_ln)
        stt = [v.alloc(2, 2), v.alloc(2, 2)]
        sa = v.alloc()
        M(f"""
        v_and_b32 v{sa}, 31, v{L}
        v_lshlrev_b32 v{sa}, 3, v{sa}
        s_lshl_b32 s{T[0]}, s{self.sI}, 10
        s_lshl_b32 s{T[1]}, s{sWl}, 9
        s_add_u32 s{T[0]}, s{T[0]}, s{T[1]}
        s_add_u32 s{T[0]}, s{T[0]}, {WS_ST}
        """)
        I(f"buffer_load_dwordx2 v[{stt[0]}:{stt[0]+1}], v{sa}, s[{self.rWS}:{self.rWS+3}], s{T[0]} offen sc1")
        tks = I(f"buffer_load_dwordx2 v[{stt[1]}:{stt[1]+1}], v{sa}, s[{self.rWS}:{self.rWS+3}], s{T[0]} offen offset:256 sc1")
        v.free(sa)
        CS = 131072
        self.colsum_publish(cs, CS)
        g.wait_lg_all()
        g.barrier()
        ca = v.alloc()
        M(f"""
        v_and_b32 v{ca}, 31, v{L}
        v_lshlrev_b32 v{ca}, 2, v{ca}
        s_lshl_b32 s{T[0]}, s{sWf}, 8
        s_lshl_b32 s{T[1]}, s{sWl}, 7
        s_add_u32 s{T[0]}, s{T[0]}, s{T[1]}
        s_add_u32 s{T[0]}, s{T[0]}, {CS}
        v_add_u32 v{ca}, s{T[0]}, v{ca}
        """)
        I(f"ds_read_b32 v{A[0][0]}, v{ca}")
        I(f"v_xor_b32 v{ca}, 128, v{ca}")
        tk = I(f"ds_read_b32 v{A[0][1]}, v{ca}")
        for k in range(1, 4):
            for r in (A[0][0], A[0][1], B[0][0], B[0][1]): I(f"v_mov_b32 v{r+k}, 0")
        I("s_mov_b64 vcc, 0xffffffff")
        g.wait_lg(tk)
        g.wait_vm(tks)
        for ftl in range(2): I(f"v_cndmask_b32 v{A[0][ftl]}, 0, v{A[0][ftl]}, vcc")
        for lt in range(2): I(f"v_cndmask_b32 v{B[0][lt]}, 0, v{stt[lt]}, vcc")
        mfmas(0, False)
        v.free(ca)
        rH = s.alloc(4, 4); self.rH = rH
        M(f"""
        s_mov_b32 s{rH}, s{self.rWS}
        s_mov_b32 s{rH+1}, s{self.rWS+1}
        s_cmp_lt_u32 s{self.sJ}, 14
        s_cselect_b32 s{rH+2}, {WS_SIZE}, 0
        s_mov_b32 s{rH+3}, 0x20000
        """)
        sHb = s.alloc(); sHb1 = s.alloc()
        M(f"""
        s_lshl_b32 s{T[0]}, s{self.sI}, 2
        s_lshl_b32 s{T[1]}, s{sWl}, 1
        s_add_u32 s{T[0]}, s{T[0]}, s{T[1]}
        s_mul_i32 s{T[0]}, s{T[0]}, 112
        s_lshl_b32 s{T[1]}, s{self.sJ}, 3
        s_add_u32 s{T[0]}, s{T[0]}, s{T[1]}
        s_lshl_b32 s{T[1]}, s{sWf}, 2
        s_add_u32 s{T[0]}, s{T[0]}, s{T[1]}
        s_lshl_b32 s{T[0]}, s{T[0]}, 10
        s_add_u32 s{sHb}, s{T[0]}, {WS_H}
        s_lshl_b32 s{T[1]}, s{sWl}, 11
        s_xor_b32 s{T[2]}, s{T[1]}, 2048
        s_add_u32 s{sHb1}, s{sHb}, s{T[2]}
        s_add_u32 s{sHb}, s{sHb}, s{T[1]}
        """)
        rsl = [v.alloc(2, 2), v.alloc(2, 2)]
        for lt in range(2):
            I(f"v_mov_b32 v{rsl[lt]}, v{stt[lt]+1}")
            I(f"v_mul_f32 v{rsl[lt]+1}, 0x{f2u(-LOG2E):08x}, v{stt[lt]+1}")
        e = v.alloc(4, 2); z = v.alloc(4, 2); o = [v.alloc(4, 4), v.alloc(4, 4)]
        nst = 0
        for lt in range(2):
            for ftl in range(2):
                d = acc[ftl][lt]; R = rsl[lt]
                for pp in range(2):
                    ob = o[nst & 1]
                    for qq in range(2):
                        q = 2 * pp + qq; x = d + 4 * q
                        M(f"""
                        v_pk_mul_f32 v[{e}:{e+1}], v[{x}:{x+1}], v[{R}:{R+1}] op_sel:[0,1] op_sel_hi:[1,1]
                        v_pk_mul_f32 v[{e+2}:{e+3}], v[{x+2}:{x+3}], v[{R}:{R+1}] op_sel:[0,1] op_sel_hi:[1,1]
                        v_exp_f32 v{e}, v{e}
                        v_exp_f32 v{e+1}, v{e+1}
                        v_exp_f32 v{e+2}, v{e+2}
                        v_exp_f32 v{e+3}, v{e+3}
                        v_pk_mul_f32 v[{z}:{z+1}], v[{x}:{x+1}], v[{R}:{R+1}] op_sel_hi:[1,0]
                        v_pk_mul_f32 v[{z+2}:{z+3}], v[{x+2}:{x+3}], v[{R}:{R+1}] op_sel_hi:[1,0]
                        v_pk_add_f32 v[{e}:{e+1}], v[{e}:{e+1}], 1.0 op_sel_hi:[1,0]
                        v_pk_add_f32 v[{e+2}:{e+3}], v[{e+2}:{e+3}], 1.0 op_sel_hi:[1,0]
                        v_rcp_f32 v{e}, v{e}
                        v_rcp_f32 v{e+1}, v{e+1}
                        v_rcp_f32 v{e+2}, v{e+2}
                        v_rcp_f32 v{e+3}, v{e+3}
                        v_pk_mul_f32 v[{z}:{z+1}], v[{z}:{z+1}], v[{e}:{e+1}]
                        v_pk_mul_f32 v[{z+2}:{z+3}], v[{z+2}:{z+3}], v[{e+2}:{e+3}]
                        v_cvt_pk_bf16_f32 v{ob+2*qq}, v{z}, v{z+1}
                        v_cvt_pk_bf16_f32 v{ob+2*qq+1}, v{z+2}, v{z+3}
                        """)
                    I(f"v_permlane32_swap_b32 v{ob}, v{ob+2}")
                    I(f"v_permlane32_swap_b32 v{ob+1}, v{ob+3}")
                    I(f"s_add_u32 s{T[0]}, s{(sHb, sHb1)[ftl]}, {(lt * 112 + pp) * 1024}")
                    self.tk_h = I(f"buffer_store_dwordx4 v[{ob}:{ob+3}], v{self.vL16}, s[{rH}:{rH+3}], s{T[0]} offen sc1")
                    nst += 1
        for row in vXa + vWa:
            for r in row: v.free(r)
        v.free(sel, 4); v.free(cs, 4)
        for bb in A + B:
            for r in bb: v.free(r, 4)
        for row in acc:
            for r in row: v.free(r, 16)
        for r in stt + rsl: v.free(r, 2)
        v.free(e, 4); v.free(z, 4); v.free(o[0], 4); v.free(o[1], 4)
        if self.stop == 'g1':
            g.wait_all(); g.barrier()
            self.set_flag(WS_FH, self.sLb)

    def colsum_publish(self, cs, CS):
        g = self.g; v = self.v; M = g.M; T = self.sT
        hi = v.alloc(); lo = v.alloc(); ad = v.alloc()
        M(f"""
        s_lshl_b32 s{T[0]}, s{self.sWf}, 1
        s_add_u32 s{T[0]}, s{T[0]}, s{self.sWl}
        s_lshl_b32 s{T[0]}, s{T[0]}, 7
        s_add_u32 s{T[0]}, s{T[0]}, {CS}
        v_lshlrev_b32 v{ad}, 2, v{self.vLane}
        v_add_u32 v{ad}, s{T[0]}, v{ad}
        s_mov_b64 s[{self.sEx}:{self.sEx+1}], exec
        s_mov_b64 exec, 0xffff
        """)
        for k in range(2):
            M(f"""
            v_cvt_pk_bf16_f32 v{hi}, v{cs+k}, v{cs+k}
            v_and_b32 v{hi}, 0xffff0000, v{hi}
            v_sub_f32 v{lo}, v{cs+k}, v{hi}
            v_cvt_pk_bf16_f32 v{lo}, v{hi}, v{lo}
            ds_write_b32 v{ad}, v{lo} offset:{64*k}
            """)
        g.I(f"s_mov_b64 exec, s[{self.sEx}:{self.sEx+1}]")
        v.free(hi); v.free(lo); v.free(ad)

    KR = 0; KRP = 4160; KRCH = 4 * 4160
    XY = 33280; XYCH = 28160; YOFF = 0; XOFF = 16384
    TAB = 33280; TABCH = 5120
    U = 43520; UCH = 4608
    EX = 52736
    STG = 98304

    def kg_params_issue(self):
        g = self.g; I = g.I; M = g.M; v = self.v; T = self.sT; s = self.s
        self.sD0 = s.alloc(); self.sCh = s.alloc(); self.sHh = s.alloc(); self.sD = s.alloc()
        po = v.alloc(); pd = v.alloc()
        M(f"""
        s_lshl_b32 s{self.sD0}, s{self.sC}, 6
        s_lshl_b32 s{T[0]}, s{self.sQ}, 1
        s_add_u32 s{self.sD0}, s{self.sD0}, s{T[0]}
        s_lshr_b32 s{self.sCh}, s{self.sV}, 1
        s_and_b32 s{self.sHh}, s{self.sV}, 1
        s_add_u32 s{self.sD}, s{self.sD0}, s{self.sCh}
        s_lshl_b32 s{T[0]}, s{self.sD}, 8
        s_lshl_b32 s{T[1]}, s{self.sHh}, 7
        s_add_u32 s{T[0]}, s{T[0]}, s{T[1]}
        v_lshlrev_b32 v{po}, 1, v{self.vLane}
        v_add_u32 v{po}, s{T[0]}, v{po}
        s_lshl_b32 s{T[0]}, s{self.sD}, 1
        v_mov_b32 v{pd}, s{T[0]}
        """)
        self.kp = [v.alloc() for _ in range(8)]
        for r, p in zip(self.kp[:6], (self.pAre, self.pAim, self.pBre, self.pBim, self.pCre, self.pCim)):
            I(f"global_load_ushort v{r}, v{po}, s[{p}:{p+1}]")
        I(f"global_load_ushort v{self.kp[6]}, v{pd}, s[{self.pLdt}:{self.pLdt+1}]")
        self.tk_kp = I(f"global_load_ushort v{self.kp[7]}, v{pd}, s[{self.pDsk}:{self.pDsk+1}]")
        v.free(po); v.free(pd)

    def kg_expand_addr(self):
        g = self.g; I = g.I; M = g.M; v = self.v
        self.xa = [v.alloc() for _ in range(12)]
        f0 = v.alloc(); f1 = v.alloc(); jb = v.alloc()
        M(f"""
        v_lshlrev_b32 v{jb}, 3, v0
        v_sub_u32 v{jb}, 2048, v{jb}
        """)
        for k in range(0, 12, 2):
            e0 = k - 4; e1 = k - 3
            M(f"""
            v_add_u32 v{f0}, {-e0}, v{jb}
            v_add_u32 v{f1}, {-e1}, v{jb}
            v_min_u32 v{f0}, 2048, v{f0}
            v_min_u32 v{f1}, 2048, v{f1}
            v_cvt_f32_u32 v{f0}, v{f0}
            v_cvt_f32_u32 v{f1}, v{f1}
            v_cvt_pk_bf16_f32 v{f0}, v{f0}, v{f1}
            v_and_b32 v{f1}, 0xffff0000, v{f0}
            v_lshlrev_b32 v{f0}, 16, v{f0}
            v_cvt_u32_f32 v{f0}, v{f0}
            v_cvt_u32_f32 v{f1}, v{f1}
            v_lshlrev_b32 v{f0}, 1, v{f0}
            v_lshlrev_b32 v{f1}, 1, v{f1}
            v_add_u32 v{self.xa[k]}, {self.TAB + 2}, v{f0}
            v_add_u32 v{self.xa[k+1]}, {self.TAB + 2}, v{f1}
            """)
        v.free(f0); v.free(f1); v.free(jb)

    def cmul(self, d, x, z, t):
        self.g.I(f"v_pk_mul_f32 v[{t}:{t+1}], v[{x}:{x+1}], v[{z}:{z+1}] op_sel_hi:[1,0]")
        self.g.I(f"v_pk_fma_f32 v[{d}:{d+1}], v[{x}:{x+1}], v[{z}:{z+1}], v[{t}:{t+1}] op_sel:[1,1,0] op_sel_hi:[0,1,1] neg_lo:[1,0,0]")

    def kgen(self):
        g = self.g; I = g.I; M = g.M; v = self.v; T = self.sT; s = self.s
        L = self.vLane
        kp = self.kp
        g.barrier()
        g.wait_vm(self.tk_kp)
        P = lambda: v.alloc(2, 2)
        dt = v.alloc(); arl = v.alloc(); air = v.alloc(); t0 = v.alloc(); t1 = v.alloc(); t2 = v.alloc()
        W = P(); dB = P(); tt = P(); tt2 = P()
        for r in kp: I(f"v_lshlrev_b32 v{r}, 16, v{r}")
        M(f"""
        v_mul_f32 v{dt}, 0x{f2u(LOG2E):08x}, v{kp[6]}
        v_exp_f32 v{dt}, v{dt}
        v_cvt_pk_bf16_f32 v{dt}, v{dt}, v{dt}
        v_and_b32 v{dt}, 0xffff0000, v{dt}
        v_mul_f32 v{arl}, v{dt}, v{kp[0]}
        v_mul_f32 v{air}, v{dt}, v{kp[1]}
        v_mul_f32 v{arl}, 0x{f2u(LOG2E):08x}, v{arl}
        v_mul_f32 v{air}, 0x{f2u(1/(2*math.pi)):08x}, v{air}
        v_mul_f32 v{dB}, v{dt}, v{kp[2]}
        v_mul_f32 v{dB+1}, v{dt}, v{kp[3]}
        v_mov_b32 v{tt2}, v{kp[4]}
        v_mov_b32 v{tt2+1}, v{kp[5]}
        """)
        self.cmul(W, tt2, dB, tt)
        self.vDsk = kp[7]
        def zdirect(z, mult):
            M(f"""
            v_mul_f32 v{t0}, {float(mult) if mult in (1,) else hex(f2u(float(mult)))}, v{arl}
            v_mul_f32 v{t1}, {float(mult) if mult in (1,) else hex(f2u(float(mult)))}, v{air}
            v_exp_f32 v{t0}, v{t0}
            v_fract_f32 v{t1}, v{t1}
            v_cos_f32 v{t2}, v{t1}
            v_sin_f32 v{t1}, v{t1}
            v_mul_f32 v{z}, v{t0}, v{t2}
            v_mul_f32 v{z+1}, v{t0}, v{t1}
            """)
        z1 = P(); z2 = P(); z4 = P(); z8 = P(); z256 = P()
        zdirect(z1, 1); zdirect(z8, 8); zdirect(z256, 256)
        self.cmul(z2, z1, z1, tt); self.cmul(z4, z2, z2, tt)
        wa = [v.alloc() for _ in range(16)]
        M(f"""
        v_lshlrev_b32 v{t0}, 2, v{L}
        s_mul_i32 s{T[0]}, s{self.sCh}, {self.XYCH}
        s_lshl_b32 s{T[1]}, s{self.sHh}, 8
        s_add_u32 s{T[0]}, s{T[0]}, s{T[1]}
        s_add_u32 s{T[0]}, s{T[0]}, {self.XY}
        v_add_u32 v{wa[0]}, s{T[0]}, v{t0}
        """)
        for k in range(1, 16): I(f"v_xor_b32 v{wa[k]}, {k << 4}, v{wa[0]}")
        pk = [v.alloc(), v.alloc()]
        cnt = [0]
        def put(val, row, isY):
            r = pk[cnt[0] & 1]; cnt[0] += 1
            if isY: I(f"v_cvt_pk_bf16_f32 v{r}, v{val}, -v{val+1}")
            else: I(f"v_cvt_pk_bf16_f32 v{r}, v{val}, v{val+1}")
            I(f"ds_write_b32 v{wa[row & 15]}, v{r} offset:{(self.YOFF if isY else self.XOFF) + row * 512}")
        ya = P(); yb = P(); xa_ = P(); xb_ = P(); xc = P(); tx = P()
        I(f"v_mov_b32 v{ya}, 1.0"); I(f"v_mov_b32 v{ya+1}, 0")
        put(ya, 0, True)
        put(z8, 1, True)
        ychain = []
        ycur = [z8]
        def ystep(j):
            dst = ya if (j & 1) == 0 else yb
            self.cmul(dst, ycur[0], z8, tt); ycur[0] = dst
            put(dst, j, True)
        xw = []
        def xs_first():
            put(W, 0, False)
        xw.append(xs_first)
        xcur = [W]
        def mk_x(row, src_get, z, dst):
            def f():
                self.cmul(dst, src_get(), z, tx); put(dst, row, False)
            return f
        prev = W
        for e in range(1, 8):
            dst = xa_ if e & 1 else xb_
            xw.append(mk_x(e, (lambda p=prev: p), z1, dst)); prev = dst
        c256 = P(); c2 = P()
        xw.append(mk_x(8, lambda: W, z256, c256))
        prev = c256
        for e in range(1, 4):
            dst = xa_ if e & 1 else xb_
            xw.append(mk_x(8 + e, (lambda p=prev: p), z2, dst)); prev = dst
        chain_rows = [12, 13, 14, 15, 20, 21, 22]
        prev = c256
        for idx, row in enumerate(chain_rows):
            dst = c2 if (idx & 1) == 0 else c256
            xw.append(mk_x(row, (lambda p=prev: p), z256, dst)); prev = dst
            if idx < 2:
                xw.append(mk_x(16 + idx, (lambda p=dst: p), z4, xc))
        xi = 0
        for j in range(2, 32):
            ystep(j)
            if xi < len(xw): xw[xi](); xi += 1
        while xi < len(xw): xw[xi](); xi += 1
        for r in (z1, z2, z4, z8, z256, ya, yb, xa_, xb_, xc, tx, c256, c2, W, dB, tt, tt2): v.free(r, 2)
        for r in wa + pk + [dt, arl, air] + kp[:7]: v.free(r)
        g.wait_lg_all()
        g.wait_vm(self.tk_h)
        g.barrier()
        self.set_flag(WS_FH, self.sLb)
        R = [v.alloc() for _ in range(4)]; RX = [v.alloc() for _ in range(4)]
        M(f"""
        v_and_b32 v{t0}, 15, v{L}
        v_lshrrev_b32 v{t1}, 4, v{L}
        v_xor_b32 v{t1}, v{t1}, v{t0}
        v_lshlrev_b32 v{t0}, 9, v{t0}
        s_mul_i32 s{T[0]}, s{self.sCh}, {self.XYCH}
        s_add_u32 s{T[0]}, s{T[0]}, {self.XY}
        v_add_u32 v{t0}, s{T[0]}, v{t0}
        s_lshl_b32 s{T[1]}, s{self.sHh}, 13
        """)
        for k in range(4):
            M(f"""
            v_xor_b32 v{t2}, {4*k}, v{t1}
            v_lshlrev_b32 v{t2}, 4, v{t2}
            v_add_u32 v{R[k]}, v{t0}, v{t2}
            v_add_u32 v{RX[k]}, s{T[1]}, v{R[k]}
            """)
        fa = [v.alloc(4, 4) for _ in range(8)]; fb = [[v.alloc(4, 4) for _ in range(8)] for _ in range(2)]
        kacc = [v.alloc(4, 4), v.alloc(4, 4)]
        tks = []
        for st in range(8):
            I(f"ds_read_b128 v[{fa[st]}:{fa[st]+3}], v{RX[st & 3]} offset:{self.XOFF + (st >> 2) * 256}")
            I(f"ds_read_b128 v[{fb[0][st]}:{fb[0][st]+3}], v{R[st & 3]} offset:{self.YOFF + (st >> 2) * 256}")
            tks.append(I(f"ds_read_b128 v[{fb[1][st]}:{fb[1][st]+3}], v{R[st & 3]} offset:{self.YOFF + 8192 + (st >> 2) * 256}"))
            if st >= 3:
                sd = st - 3
                g.wait_lg(tks[sd])
                for ct in range(2):
                    c_ = "0" if sd == 0 else f"v[{kacc[ct]}:{kacc[ct]+3}]"
                    I(f"v_mfma_f32_16x16x32_bf16 v[{kacc[ct]}:{kacc[ct]+3}], v[{fa[sd]}:{fa[sd]+3}], v[{fb[ct][sd]}:{fb[ct][sd]+3}], {c_}")
        for sd in range(5, 8):
            g.wait_lg(tks[sd])
            for ct in range(2):
                I(f"v_mfma_f32_16x16x32_bf16 v[{kacc[ct]}:{kacc[ct]+3}], v[{fa[sd]}:{fa[sd]+3}], v[{fb[ct][sd]}:{fb[ct][sd]+3}], v[{kacc[ct]}:{kacc[ct]+3}]")
        for r in fa + fb[0] + fb[1]: v.free(r, 4)
        for r in R + RX: v.free(r)
        vb = v.alloc(); vs = v.alloc(); gi = v.alloc()
        sB = [T[2], T[3], T[4], T[5]]; sS = [T[6], T[7]]
        P_ = self.sP
        M(f"""
        s_cmp_eq_u32 s{self.sHh}, 0
        s_cselect_b32 s{sB[0]}, 0, {2*516}
        s_cselect_b32 s{sB[1]}, {2*4}, {2*1536}
        s_cselect_b32 s{sS[0]}, 2, 512
        v_lshrrev_b32 v{gi}, 4, v{L}
        v_mov_b32 v{vb}, s{sB[0]}
        v_mov_b32 v{vs}, s{sS[0]}
        v_mov_b32 v{t0}, s{sB[1]}
        v_cmp_eq_u32 vcc, 1, v{gi}
        v_cndmask_b32 v{vb}, v{vb}, v{t0}, vcc
        v_mov_b32 v{t0}, {2*256}
        v_mov_b32 v{t1}, 4
        v_cmp_eq_u32 vcc, 2, v{gi}
        v_cndmask_b32 v{vb}, v{vb}, v{t0}, vcc
        v_cndmask_b32 v{vs}, v{vs}, v{t1}, vcc
        v_mov_b32 v{t0}, {2*512}
        v_mov_b32 v{t1}, 512
        v_cmp_eq_u32 vcc, 3, v{gi}
        v_cndmask_b32 v{vb}, v{vb}, v{t0}, vcc
        v_cndmask_b32 v{vs}, v{vs}, v{t1}, vcc
        v_and_b32 v{t0}, 15, v{L}
        v_lshlrev_b32 v{t0}, 4, v{t0}
        s_mul_i32 s{T[0]}, s{self.sCh}, {self.TABCH}
        s_add_u32 s{T[0]}, s{T[0]}, {self.TAB + 2}
        v_add3_u32 v{vb}, v{vb}, v{t0}, s{T[0]}
        """)
        g.barrier()
        M(f"""
        s_mov_b64 s[{self.sEx}:{self.sEx+1}], exec
        s_cmp_eq_u32 s{self.sHh}, 0
        s_cselect_b64 exec, -1, 0xffffffff
        """)
        for r in range(4):
            for ct in range(2):
                I(f"v_cvt_pk_bf16_f32 v{t0+ct if False else (t0, t1)[ct]}, v{kacc[ct]+r}, v{kacc[ct]+r}")
                I(f"ds_write_b16 v{vb}, v{(t0, t1)[ct]} offset:{ct*256}")
            if r < 3: I(f"v_add_u32 v{vb}, v{vb}, v{vs}")
        M(f"""
        s_mov_b64 exec, 1
        s_mul_i32 s{T[0]}, s{self.sCh}, {self.TABCH}
        s_add_u32 s{T[0]}, s{T[0]}, {self.TAB}
        v_mov_b32 v{t0}, s{T[0]}
        v_mov_b32 v{t1}, 0
        ds_write_b16 v{t0}, v{t1}
        s_mov_b64 exec, s[{self.sEx}:{self.sEx+1}]
        """)
        v.free(kacc[0], 4); v.free(kacc[1], 4); v.free(vb); v.free(vs); v.free(gi)
        g.wait_lg_all()
        g.barrier()
        wa0 = v.alloc()
        I(f"v_lshlrev_b32 v{wa0}, 4, v0")
        xa = self.xa
        for ch in range(2):
            d = v.alloc(8, 2)
            o = v.alloc(8, 2)
            e = v.alloc(12)
            tk = None
            for k in range(1, 12):
                tk = I(f"ds_read_u16 v{e + k}, v{xa[k]} offset:{ch * self.TABCH}")
            g.wait_lg(tk)
            I(f"v_lshlrev_b32 v{d}, 16, v{e+1}")
            for m in range(1, 6): I(f"v_lshl_or_b32 v{d+m}, v{e+2*m+1}, 16, v{e+2*m}")
            self.kr_write(d, o, wa0, ch * self.KRCH)
            v.free(d, 8); v.free(o, 8); v.free(e, 12)
        d = v.alloc(8, 2); o = v.alloc(8, 2); ta = v.alloc(); tz = v.alloc(); tw = v.alloc()
        M(f"""
        s_mov_b64 s[{self.sEx}:{self.sEx+1}], exec
        s_mov_b64 exec, 0x3f
        v_cmp_le_u32 vcc, 3, v{L}
        v_mov_b32 v{t0}, {self.TABCH}
        v_cndmask_b32 v{tz}, 0, v{t0}, vcc
        v_add_u32 v{tz}, {self.TAB}, v{tz}
        v_mov_b32 v{t0}, {self.KRCH - 48}
        v_cndmask_b32 v{tw}, 0, v{t0}, vcc
        v_lshlrev_b32 v{t0}, 4, v{L}
        v_add_u32 v{tw}, v{tw}, v{t0}
        v_add_u32 v{tw}, 4096, v{tw}
        v_cmp_eq_u32 vcc, 0, v{L}
        v_cmp_eq_u32 s[{P_}:{P_+1}], 3, v{L}
        s_or_b64 vcc, vcc, s[{P_}:{P_+1}]
        """)
        e = v.alloc(4)
        tk = None
        for idx, kk in enumerate((3, 2, 1, 0)):
            I(f"v_add_u32 v{t0}, {2 * (kk + 1)}, v{tz}")
            I(f"v_cndmask_b32 v{ta}, v{tz}, v{t0}, vcc")
            tk = I(f"ds_read_u16 v{e+idx}, v{ta}")
        for k in range(3, 8): I(f"v_mov_b32 v{d+k}, 0")
        g.wait_lg(tk)
        I(f"v_lshlrev_b32 v{d}, 16, v{e}")
        I(f"v_lshl_or_b32 v{d+1}, v{e+2}, 16, v{e+1}")
        I(f"v_mov_b32 v{d+2}, v{e+3}")
        v.free(e, 4)
        self.kr_write(d, o, tw, 0)
        I(f"s_mov_b64 exec, s[{self.sEx}:{self.sEx+1}]")
        v.free(d, 8); v.free(o, 8); v.free(ta); v.free(tz); v.free(tw); v.free(wa0)
        for r in xa: v.free(r)
        for r in (t0, t1, t2): v.free(r)
        if self.stop == 'kg':
            g.wait_lg_all(); g.barrier()
            a = v.alloc(); dd = v.alloc(4, 4); ga = v.alloc()
            for ch in range(2):
                for rnd in range(2):
                    M(f"""
                    v_lshlrev_b32 v{a}, 4, v0
                    v_add_u32 v{a}, {ch * self.KRCH + rnd * 4096}, v{a}
                    s_add_u32 s{T[0]}, s{self.sD0}, {ch}
                    s_mul_i32 s{T[0]}, s{T[0]}, 4128
                    s_add_u32 s{T[0]}, s{T[0]}, {WS_DBG + rnd * 4096}
                    v_lshlrev_b32 v{ga}, 4, v0
                    """)
                    if rnd == 1:
                        M(f"""
                        v_cmp_gt_u32 vcc, 2, v0
                        s_and_saveexec_b64 s[{self.sEx}:{self.sEx+1}], vcc
                        """)
                        lab = g.label("L_dbg"); I(f"s_cbranch_execz {lab}")
                    I(f"ds_read_b128 v[{dd}:{dd+3}], v{a}"); g.wait_lg_all()
                    I(f"buffer_store_dwordx4 v[{dd}:{dd+3}], v{ga}, s[{self.rWS}:{self.rWS+3}], s{T[0]} offen"); g.wait_vm_all()
                    if rnd == 1:
                        g.L(lab); I(f"s_mov_b64 exec, s[{self.sEx}:{self.sEx+1}]")

    def kr_write(self, d, o, wa, off):
        g = self.g; I = g.I
        I(f"ds_write_b128 v{wa}, v[{d+2}:{d+5}] offset:{off}")
        for m in range(4): I(f"v_alignbit_b32 v{o+m}, v{d+2+m}, v{d+1+m}, 16")
        I(f"ds_write_b128 v{wa}, v[{o}:{o+3}] offset:{off + self.KRP}")
        for m in range(4): I(f"v_alignbit_b32 v{o+4+m}, v{d+1+m}, v{d+m}, 16")
        I(f"ds_write_b128 v{wa}, v[{o+4}:{o+7}] offset:{off + 3 * self.KRP}")
        for m in range(4): I(f"ds_write_b32 v{wa}, v{d+1+m} offset:{off + 2 * self.KRP + 4 * m}")

    def w2_setup(self):
        g = self.g; I = g.I; M = g.M; v = self.v; T = self.sT; s = self.s; L = self.vLane
        self.vW2o = v.alloc(); self.vTa = [v.alloc(), v.alloc()]
        self.sW2src = s.alloc(); self.sW2lds = s.alloc(); self.sN = s.alloc(); self.sM = s.alloc()
        t0 = v.alloc(); t1 = v.alloc(); t2 = v.alloc()
        M(f"""
        s_and_b32 s{self.sM}, s{self.sQ}, 3
        s_lshl_b32 s{T[0]}, s{self.sC}, 2
        s_add_u32 s{self.sM}, s{self.sM}, s{T[0]}
        s_lshr_b32 s{self.sN}, s{self.sQ}, 2
        s_mul_i32 s{self.sW2src}, s{self.sV}, {448 * 1024}
        s_lshl_b32 s{T[0]}, s{self.sN}, 7
        s_add_u32 s{self.sW2src}, s{self.sW2src}, s{T[0]}
        s_lshl_b32 s{self.sW2lds}, s{self.sV}, 13
        s_add_u32 s{self.sW2lds}, s{self.sW2lds}, {self.STG}
        v_lshrrev_b32 v{t0}, 3, v{L}
        v_lshlrev_b32 v{t0}, 10, v{t0}
        v_lshrrev_b32 v{t1}, 4, v{L}
        v_and_b32 v{t1}, 1, v{t1}
        v_lshlrev_b32 v{t1}, 2, v{t1}
        v_and_b32 v{t2}, 7, v{L}
        v_xor_b32 v{t1}, v{t1}, v{t2}
        v_lshlrev_b32 v{t1}, 4, v{t1}
        v_add_u32 v{self.vW2o}, v{t0}, v{t1}
        """)
        M(f"""
        v_lshrrev_b32 v{t0}, 5, v{L}
        v_lshlrev_b32 v{t0}, 3, v{t0}
        v_lshrrev_b32 v{t1}, 2, v{L}
        v_and_b32 v{t1}, 3, v{t1}
        v_add_u32 v{t0}, v{t0}, v{t1}
        v_lshlrev_b32 v{t0}, 7, v{t0}
        v_lshrrev_b32 v{t2}, 4, v{L}
        v_and_b32 v{t2}, 1, v{t2}
        v_lshlrev_b32 v{t2}, 5, v{t2}
        v_add_u32 v{t0}, v{t0}, v{t2}
        v_and_b32 v{t2}, 3, v{L}
        v_lshlrev_b32 v{t2}, 3, v{t2}
        v_add_u32 v{t0}, v{t0}, v{t2}
        v_add_u32 v{t0}, s{self.sW2lds}, v{t0}
        v_lshrrev_b32 v{t1}, 1, v{t1}
        s_lshr_b32 s{T[0]}, s{self.sV}, 1
        v_xor_b32 v{t1}, s{T[0]}, v{t1}
        v_lshlrev_b32 v{t1}, 6, v{t1}
        v_add_u32 v{self.vTa[0]}, v{t0}, v{t1}
        v_xor_b32 v{t1}, 64, v{t1}
        v_add_u32 v{self.vTa[1]}, v{t0}, v{t1}
        """)
        for r in (t0, t1, t2): v.free(r)
        self.aW2 = self.a.alloc(224, 4)
        self.tk_w2 = {}

    def w2_issue(self, r):
        g = self.g; I = g.I; T = self.sT
        slot = (r & 1) * 32768
        t = None
        for c in range(8):
            I(f"s_add_u32 m0, s{self.sW2lds}, {slot + c * 1024}")
            I(f"s_add_u32 s{T[0]}, s{self.sW2src}, {(64 * r + 8 * c) * 1024}")
            t = I(f"buffer_load_dwordx4 v{self.vW2o}, s[{self.rW2}:{self.rW2+3}], s{T[0]} offen lds")
        self.tk_w2[r] = t

    def w2_read(self, r):
        g = self.g; I = g.I
        g.wait_vm(self.tk_w2[r])
        slot = (r & 1) * 32768
        t = None
        n = 0
        for st in range(4):
            for dt in range(2):
                for hf in range(2):
                    a = self.aW2 + (r * 4 + st) * 8 + dt * 4 + 2 * hf
                    t = I(f"ds_read_b64_tr_b16 a[{a}:{a+1}], v{self.vTa[dt]} offset:{slot + (16 * st + 4 * hf) * 128}")
                    n += 1
                    if n == 8: g.wait_lg(t - 4)
        g.wait_lg(t)

    def conv_u_issue(self):
        g = self.g; I = g.I; M = g.M; v = self.v; T = self.sT
        fa = v.alloc()
        M(f"""
        v_lshlrev_b32 v{fa}, 3, v{self.vLane}
        v_add_u32 v{fa}, {WS_FLN}, v{fa}
        """)
        h = self.poll_issue(fa, n=4, stride=512)
        self.poll_check(h)
        self.uu = [v.alloc(4, 4), v.alloc(4, 4)]
        ga = v.alloc()
        M(f"""
        v_lshlrev_b32 v{ga}, 13, v0
        s_lshl_b32 s{T[0]}, s{self.sD0}, 4
        """)
        I(f"buffer_load_dwordx4 v[{self.uu[0]}:{self.uu[0]+3}], v{ga}, s[{self.rWS}:{self.rWS+3}], s{T[0]} offen sc1")
        self.tk_u = I(f"buffer_load_dwordx4 v[{self.uu[1]}:{self.uu[1]+3}], v{ga}, s[{self.rWS}:{self.rWS+3}], s{T[0]} offen offset:16 sc1")
        v.free(ga)

    def conv(self):
        g = self.g; I = g.I; M = g.M; v = self.v; T = self.sT; s = self.s; L = self.vLane
        self.w2_setup()
        self.w2_issue(0); self.w2_issue(1)
        self.conv_u_issue()
        wa = v.alloc(); z = v.alloc(4, 4)
        M(f"""
        v_lshlrev_b32 v{wa}, 4, v0
        v_add_u32 v{wa}, {self.U + 512}, v{wa}
        """)
        g.wait_vm(self.tk_u)
        I(f"ds_write_b128 v{wa}, v[{self.uu[0]}:{self.uu[0]+3}]")
        I(f"ds_write_b128 v{wa}, v[{self.uu[1]}:{self.uu[1]+3}] offset:{self.UCH}")
        for k in range(4): I(f"v_mov_b32 v{z+k}, 0")
        lab = g.label("L_zp")
        M(f"""
        s_cmp_lg_u32 s{self.sV}, 0
        s_cbranch_scc1 {lab}
        v_lshrrev_b32 v{wa}, 5, v{L}
        v_mul_u32_u24 v{wa}, {self.UCH}, v{wa}
        v_and_b32 v{z+0}, 31, v{L}
        v_lshlrev_b32 v{z+0}, 4, v{z+0}
        v_add3_u32 v{wa}, v{wa}, v{z+0}, {0}
        v_add_u32 v{wa}, {self.U}, v{wa}
        v_mov_b32 v{z+0}, 0
        """)
        g.raw(f"ds_write_b128 v{wa}, v[{z}:{z+3}]")
        g.L(lab)
        I("s_waitcnt lgkmcnt(0)"); g.lg_done = g.lg
        g.barrier()
        v.free(wa); v.free(z, 4); v.free(self.uu[0], 4); v.free(self.uu[1], 4)
        vKA = v.alloc(); vUB = v.alloc(); t0 = v.alloc(); t1 = v.alloc(); t2 = v.alloc()
        M(f"""
        v_and_b32 v{t0}, 3, v{L}
        v_mul_u32_u24 v{vKA}, {self.KRP}, v{t0}
        v_lshrrev_b32 v{t1}, 4, v{L}
        v_lshlrev_b32 v{t1}, 4, v{t1}
        v_sub_u32 v{vKA}, v{vKA}, v{t1}
        v_and_b32 v{t0}, 15, v{L}
        v_lshrrev_b32 v{t2}, 2, v{t0}
        v_lshlrev_b32 v{t2}, 3, v{t2}
        v_sub_u32 v{vKA}, v{vKA}, v{t2}
        s_mul_i32 s{T[0]}, s{self.sCh}, {self.KRCH}
        s_lshl_b32 s{T[1]}, s{self.sHh}, 8
        s_sub_u32 s{T[0]}, s{T[0]}, s{T[1]}
        s_add_u32 s{T[0]}, s{T[0]}, {self.KR + 2 * 2056 - 64 * 63 + 256}
        v_add_u32 v{vKA}, s{T[0]}, v{vKA}
        v_lshlrev_b32 v{vUB}, 5, v{t0}
        v_sub_u32 v{vUB}, v{vUB}, v{t1}
        s_mul_i32 s{T[0]}, s{self.sCh}, {self.UCH}
        s_sub_u32 s{T[0]}, s{T[0]}, s{T[1]}
        s_add_u32 s{T[0]}, s{T[0]}, {self.U + 2 * 264 - 192}
        v_add_u32 v{vUB}, s{T[0]}, v{vUB}
        """)
        FA = [[v.alloc(4, 4) for _ in range(8)] for _ in range(2)]
        FB = [[v.alloc(4, 4) for _ in range(8)] for _ in range(2)]
        acc = [v.alloc(4, 4) for _ in range(8)]
        def rd(u, k, buf):
            a = FA[buf][k]; b = FB[buf][k]
            I(f"ds_read_b64 v[{a}:{a+1}], v{vKA} offset:{64 * (59 - 8 * k - u)}")
            I(f"ds_read_b64 v[{a+2}:{a+3}], v{vKA} offset:{64 * (59 - 8 * k - u) + 8}")
            return I(f"ds_read_b128 v[{b}:{b+3}], v{vUB} offset:{64 * (8 * k + 3 - u)}")
        for k in range(8):
            tk = rd(0, k, 0)
        w2r = 0
        for u in range(4):
            buf = u & 1
            g.wait_lg_all()
            for tau in range(8):
                if u < 3: rd(u + 1, tau, buf ^ 1)
                for k in range(tau + 1):
                    first = (u == 0 and k == 0)
                    d = acc[tau]
                    c_ = "0" if first else f"v[{d}:{d+3}]"
                    I(f"v_mfma_f32_16x16x32_bf16 v[{d}:{d+3}], v[{FA[buf][k]}:{FA[buf][k]+3}], v[{FB[buf][tau-k]}:{FB[buf][tau-k]+3}], {c_}")
            g.wait_lg_all()
            self.w2_read(w2r)
            if w2r + 2 < 7: self.w2_issue(w2r + 2)
            w2r += 1
        self.w2r = w2r
        for bb in FA + FB:
            for r in bb: v.free(r, 4)
        lab = g.label("L_sw")
        I(f"s_cmp_eq_u32 s{self.sHh}, 0")
        I(f"s_cbranch_scc1 {lab}")
        for k in range(4):
            for r in range(4): I(f"v_swap_b32 v{acc[k]+r}, v{acc[k+4]+r}")
        g.L(lab)
        ea = v.alloc(); eb = v.alloc()
        M(f"""
        s_lshl_b32 s{T[0]}, s{self.sV}, 12
        s_add_u32 s{T[0]}, s{T[0]}, {self.EX}
        v_add_u32 v{ea}, s{T[0]}, v{self.vL16}
        v_xor_b32 v{eb}, 4096, v{ea}
        """)
        assert self.EX % 8192 == 0 or True
        for k in range(4): I(f"ds_write_b128 v{ea}, v[{acc[4+k]}:{acc[4+k]+3}] offset:{k*1024}")
        M(f"""
        s_xor_b32 s{T[0]}, s{self.sV}, 1
        s_lshl_b32 s{T[0]}, s{T[0]}, 12
        s_add_u32 s{T[0]}, s{T[0]}, {self.EX}
        v_add_u32 v{eb}, s{T[0]}, v{self.vL16}
        """)
        ua = v.alloc(); uv = [v.alloc(2, 2) for _ in range(4)]
        M(f"""
        v_and_b32 v{t0}, 15, v{L}
        v_lshlrev_b32 v{ua}, 5, v{t0}
        v_lshrrev_b32 v{t1}, 4, v{L}
        v_lshlrev_b32 v{t1}, 3, v{t1}
        v_add_u32 v{ua}, v{ua}, v{t1}
        v_mov_b32 v{t2}, v{ua}
        s_mul_i32 s{T[0]}, s{self.sCh}, {self.UCH}
        s_lshl_b32 s{T[1]}, s{self.sHh}, 11
        s_add_u32 s{T[0]}, s{T[0]}, s{T[1]}
        s_add_u32 s{T[0]}, s{T[0]}, {self.U + 512}
        v_add_u32 v{ua}, s{T[0]}, v{ua}
        """)
        for k in range(4): I(f"ds_read_b64 v[{uv[k]}:{uv[k]+1}], v{ua} offset:{k*512}")
        g.wait_lg_all()
        g.barrier()
        pr = [v.alloc(4, 4) for _ in range(4)]
        for k in range(4): tk = I(f"ds_read_b128 v[{pr[k]}:{pr[k]+3}], v{eb} offset:{k*1024}")
        M(f"""
        s_lshl_b32 s{T[0]}, s{self.sD}, 12
        s_lshl_b32 s{T[1]}, s{self.sHh}, 11
        s_add_u32 s{T[0]}, s{T[0]}, s{T[1]}
        s_add_u32 s{T[0]}, s{T[0]}, {WS_S}
        """)
        g.wait_lg(tk)
        x4 = v.alloc(4); so = [v.alloc(2, 2), v.alloc(2, 2)]
        D = self.vDsk
        for k in range(4):
            y = acc[k]; p = pr[k]; o = so[k & 1]
            M(f"""
            v_add_f32 v{y}, v{y}, v{p}
            v_add_f32 v{y+1}, v{y+1}, v{p+1}
            v_add_f32 v{y+2}, v{y+2}, v{p+2}
            v_add_f32 v{y+3}, v{y+3}, v{p+3}
            v_lshlrev_b32 v{x4}, 16, v{uv[k]}
            v_and_b32 v{x4+1}, 0xffff0000, v{uv[k]}
            v_lshlrev_b32 v{x4+2}, 16, v{uv[k]+1}
            v_and_b32 v{x4+3}, 0xffff0000, v{uv[k]+1}
            v_fmac_f32 v{y}, v{x4}, v{D}
            v_fmac_f32 v{y+1}, v{x4+1}, v{D}
            v_fmac_f32 v{y+2}, v{x4+2}, v{D}
            v_fmac_f32 v{y+3}, v{x4+3}, v{D}
            v_cvt_pk_bf16_f32 v{o}, v{y}, v{y+1}
            v_cvt_pk_bf16_f32 v{o+1}, v{y+2}, v{y+3}
            """)
            self.tk_s = I(f"buffer_store_dwordx2 v[{o}:{o+1}], v{t2}, s[{self.rWS}:{self.rWS+3}], s{T[0]} offen offset:{k*512} sc1")
        for r in acc + pr: v.free(r, 4)
        for r in uv + so: v.free(r, 2)
        v.free(x4, 4)
        for r in (vKA, vUB, t0, t1, t2, ea, eb, ua, D): v.free(r)
        if self.stop == 'cv':
            g.wait_all(); g.barrier()

    def gemm2(self):
        g = self.g; I = g.I; M = g.M; v = self.v; T = self.sT; s = self.s; L = self.vLane
        RED = 0; XT = 49152; ST_ = 57344
        sV = self.sV
        fa = v.alloc()
        M(f"""
        v_and_b32 v{fa}, 15, v{L}
        v_lshlrev_b32 v{fa}, 3, v{fa}
        s_lshr_b32 s{T[0]}, s{self.sM}, 1
        s_lshl_b32 s{T[0]}, s{T[0]}, 7
        s_add_u32 s{T[0]}, s{T[0]}, {WS_FH}
        v_add_u32 v{fa}, s{T[0]}, v{fa}
        """)
        h = self.poll_issue(fa)
        xt = [v.alloc(4, 4), v.alloc(4, 4)]; vo = v.alloc(); vo2 = v.alloc()
        sXo = s.alloc()
        M(f"""
        v_lshrrev_b32 v{vo}, 3, v{L}
        v_lshlrev_b32 v{vo2}, 12, v{vo}
        v_lshlrev_b32 v{vo}, 10, v{vo}
        v_and_b32 v{xt[0]}, 7, v{L}
        v_lshlrev_b32 v{xt[0]}, 4, v{xt[0]}
        v_add_u32 v{vo}, v{vo}, v{xt[0]}
        v_add_u32 v{vo2}, v{vo2}, v{xt[0]}
        s_lshl_b32 s{sXo}, s{self.sM}, 16
        s_lshl_b32 s{T[0]}, s{sV}, 14
        s_add_u32 s{sXo}, s{sXo}, s{T[0]}
        s_lshl_b32 s{T[0]}, s{self.sN}, 7
        s_add_u32 s{sXo}, s{sXo}, s{T[0]}
        s_add_u32 s{T[0]}, s{sXo}, 8192
        """)
        I(f"buffer_load_dwordx4 v[{xt[0]}:{xt[0]+3}], v{vo}, s[{self.rX}:{self.rX+3}], s{sXo} offen")
        tk_x = I(f"buffer_load_dwordx4 v[{xt[1]}:{xt[1]+3}], v{vo}, s[{self.rX}:{self.rX+3}], s{T[0]} offen")
        self.poll_check(h)
        D = 14
        hb = [[v.alloc(4, 4) for _ in range(2)] for _ in range(D)]
        sHs = [s.alloc(), s.alloc()]
        M(f"""
        s_lshl_b32 s{T[0]}, s{self.sM}, 1
        s_and_b32 s{T[1]}, s{sV}, 1
        s_add_u32 s{T[2]}, s{T[0]}, s{T[1]}
        s_xor_b32 s{T[1]}, s{T[1]}, 1
        s_add_u32 s{T[3]}, s{T[0]}, s{T[1]}
        s_mul_i32 s{T[2]}, s{T[2]}, 112
        s_mul_i32 s{T[3]}, s{T[3]}, 112
        s_mul_i32 s{T[0]}, s{sV}, 28
        s_add_u32 s{T[2]}, s{T[2]}, s{T[0]}
        s_add_u32 s{T[3]}, s{T[3]}, s{T[0]}
        s_lshl_b32 s{T[2]}, s{T[2]}, 10
        s_lshl_b32 s{T[3]}, s{T[3]}, 10
        s_add_u32 s{sHs[0]}, s{T[2]}, {WS_H}
        s_add_u32 s{sHs[1]}, s{T[3]}, {WS_H}
        """)
        tkh = {}
        def hload(st):
            for ls in range(2):
                r = hb[st % D][ls]
                if st % 4 == 0 and st > 0: I(f"s_add_u32 s{sHs[ls]}, s{sHs[ls]}, 4096")
                tkh[(st, ls)] = I(f"buffer_load_dwordx4 v[{r}:{r+3}], v{self.vL16}, s[{self.rWS}:{self.rWS+3}], s{sHs[ls]} offen offset:{(st % 4) * 1024} sc1")
        for st in range(D): hload(st)
        for r in range(self.w2r, 7):
            self.w2_read(r)
            if r + 2 < 7: self.w2_issue(r + 2)
        g.wait_vm(self.tk_s)
        g.barrier()
        M(f"""
        s_lshl_b32 s{T[2]}, s{self.sC}, 5
        s_add_u32 s{T[2]}, s{T[2]}, s{self.sQ}
        """)
        self.set_flag(WS_FS, T[2])
        xw = [v.alloc(), v.alloc()]; t0 = v.alloc(); t1 = v.alloc()
        M(f"""
        v_lshrrev_b32 v{t0}, 3, v{L}
        v_lshlrev_b32 v{t0}, 7, v{t0}
        v_lshrrev_b32 v{t1}, 4, v{L}
        v_and_b32 v{xw[1]}, 7, v{L}
        v_xor_b32 v{t1}, v{t1}, v{xw[1]}
        v_lshlrev_b32 v{t1}, 4, v{t1}
        s_lshl_b32 s{T[0]}, s{sV}, 11
        s_add_u32 s{T[0]}, s{T[0]}, {XT}
        v_add3_u32 v{xw[0]}, v{t0}, v{t1}, s{T[0]}
        v_xor_b32 v{xw[1]}, 64, v{xw[0]}
        v_add_u32 v{xw[1]}, 1024, v{xw[1]}
        """)
        g.wait_vm(tk_x)
        for e in range(2): I(f"ds_write_b128 v{xw[e]}, v[{xt[e]}:{xt[e]+3}]")
        acc = [v.alloc(16, 4) for _ in range(4)]
        hs = None
        for st in range(28):
            g.wait_vm(tkh[(st, 1)])
            for ds_ in range(2):
                for ls in range(2):
                    d = acc[2 * ds_ + ls]; a = self.aW2 + st * 8 + ds_ * 4; b = hb[st % D][ls]
                    c_ = "0" if st == 0 else f"v[{d}:{d+15}]"
                    I(f"v_mfma_f32_32x32x16_bf16 v[{d}:{d+15}], a[{a}:{a+3}], v[{b}:{b+3}], {c_}")
            if st + D < 28: hload(st + D)
            if st == 14:
                fs = v.alloc()
                M(f"""
                v_and_b32 v{fs}, 31, v{L}
                v_lshlrev_b32 v{fs}, 3, v{fs}
                s_lshl_b32 s{T[0]}, s{self.sN}, 8
                s_add_u32 s{T[0]}, s{T[0]}, {WS_FS}
                v_add_u32 v{fs}, s{T[0]}, v{fs}
                """)
                hs = self.poll_issue(fs)
        self.poll_check(hs)
        M(f"""
        s_lshl_b32 s{T[0]}, s{self.sN}, 18
        s_lshl_b32 s{T[1]}, s{sV}, 16
        s_add_u32 s{T[0]}, s{T[0]}, s{T[1]}
        s_lshl_b32 s{T[1]}, s{self.sM}, 7
        s_add_u32 s{T[0]}, s{T[0]}, s{T[1]}
        s_add_u32 s{T[0]}, s{T[0]}, {WS_S}
        s_add_u32 s{T[1]}, s{T[0]}, 32768
        """)
        I(f"buffer_load_dwordx4 v[{xt[0]}:{xt[0]+3}], v{vo2}, s[{self.rWS}:{self.rWS+3}], s{T[0]} offen sc1")
        tk_st = I(f"buffer_load_dwordx4 v[{xt[1]}:{xt[1]+3}], v{vo2}, s[{self.rWS}:{self.rWS+3}], s{T[1]} offen sc1")
        ra = v.alloc()
        for k in range(1, 4):
            M(f"""
            s_xor_b32 s{T[2]}, s{sV}, {k}
            s_mul_i32 s{T[2]}, s{T[2]}, 12288
            s_add_u32 s{T[2]}, s{T[2]}, {RED + (k - 1) * 4096}
            v_add_u32 v{ra}, s{T[2]}, v{self.vL16}
            """)
            for q in range(4): I(f"ds_write_b128 v{ra}, v[{acc[k]+4*q}:{acc[k]+4*q+3}] offset:{q*1024}")
        sw = v.alloc()
        M(f"""
        v_lshrrev_b32 v{t0}, 3, v{L}
        v_lshlrev_b32 v{t0}, 7, v{t0}
        v_lshrrev_b32 v{t1}, 4, v{L}
        v_and_b32 v{t1}, 1, v{t1}
        v_lshlrev_b32 v{t1}, 2, v{t1}
        v_and_b32 v{sw}, 7, v{L}
        v_xor_b32 v{t1}, v{t1}, v{sw}
        v_lshlrev_b32 v{t1}, 4, v{t1}
        s_lshl_b32 s{T[0]}, s{sV}, 11
        s_add_u32 s{T[0]}, s{T[0]}, {ST_}
        v_add3_u32 v{sw}, v{t0}, v{t1}, s{T[0]}
        """)
        g.wait_vm(tk_st)
        I(f"ds_write_b128 v{sw}, v[{xt[0]}:{xt[0]+3}]")
        I(f"ds_write_b128 v{sw}, v[{xt[1]}:{xt[1]+3}] offset:1024")
        g.wait_lg_all()
        g.barrier()
        pr = [acc[1], acc[2], acc[3]]
        M(f"""
        s_mul_i32 s{T[0]}, s{sV}, 12288
        s_add_u32 s{T[0]}, s{T[0]}, {RED}
        v_add_u32 v{ra}, s{T[0]}, v{self.vL16}
        """)
        for k in range(3):
            for q in range(4): I(f"ds_read_b128 v[{pr[k]+4*q}:{pr[k]+4*q+3}], v{ra} offset:{k*4096 + q*1024}")
        sa = v.alloc(); xa = v.alloc(); sv = [v.alloc(2, 2) for _ in range(4)]; xv = [v.alloc(2, 2) for _ in range(4)]
        M(f"""
        v_lshrrev_b32 v{t0}, 5, v{L}
        v_lshlrev_b32 v{t0}, 2, v{t0}
        v_lshrrev_b32 v{t1}, 2, v{L}
        v_and_b32 v{t1}, 3, v{t1}
        v_add_u32 v{t0}, v{t0}, v{t1}
        v_lshlrev_b32 v{sa}, 7, v{t0}
        v_lshrrev_b32 v{t1}, 1, v{t1}
        s_and_b32 s{T[0]}, s{sV}, 1
        v_xor_b32 v{t1}, s{T[0]}, v{t1}
        v_lshlrev_b32 v{t1}, 6, v{t1}
        v_add_u32 v{sa}, v{sa}, v{t1}
        v_lshrrev_b32 v{t1}, 4, v{L}
        v_and_b32 v{t1}, 1, v{t1}
        v_lshlrev_b32 v{t1}, 5, v{t1}
        v_add_u32 v{sa}, v{sa}, v{t1}
        v_and_b32 v{t1}, 3, v{L}
        v_lshlrev_b32 v{t1}, 3, v{t1}
        v_add_u32 v{sa}, v{sa}, v{t1}
        s_lshr_b32 s{T[1]}, s{sV}, 1
        s_lshl_b32 s{T[1]}, s{T[1]}, 12
        s_add_u32 s{T[1]}, s{T[1]}, {ST_}
        v_add_u32 v{sa}, s{T[1]}, v{sa}
        """)
        for q in range(4): I(f"ds_read_b64_tr_b16 v[{sv[q]}:{sv[q]+1}], v{sa} offset:{q*1024}")
        M(f"""
        v_and_b32 v{t0}, 31, v{L}
        v_lshrrev_b32 v{t1}, 1, v{t0}
        v_and_b32 v{t1}, 7, v{t1}
        s_lshr_b32 s{T[1]}, s{sV}, 1
        s_lshl_b32 s{T[1]}, s{T[1]}, 2
        v_xor_b32 v{t1}, s{T[1]}, v{t1}
        v_lshlrev_b32 v{t1}, 4, v{t1}
        v_lshlrev_b32 v{t0}, 7, v{t0}
        v_add_u32 v{xa}, v{t0}, v{t1}
        v_lshrrev_b32 v{t0}, 5, v{L}
        v_lshlrev_b32 v{t0}, 3, v{t0}
        v_add_u32 v{xa}, v{xa}, v{t0}
        s_and_b32 s{T[0]}, s{sV}, 1
        s_lshl_b32 s{T[0]}, s{T[0]}, 12
        s_add_u32 s{T[0]}, s{T[0]}, {XT}
        v_add_u32 v{xa}, s{T[0]}, v{xa}
        """)
        xq = [xa] + [v.alloc() for _ in range(3)]
        for q in range(1, 4): I(f"v_xor_b32 v{xq[q]}, {q << 4}, v{xa}")
        for q in range(4): I(f"ds_read_b64 v[{xv[q]}:{xv[q]+1}], v{xq[q]}")
        g.wait_lg_all()
        o = acc[0]
        e = v.alloc(4, 2); u4 = v.alloc(4, 2); x4 = v.alloc(4, 2); ob = [v.alloc(2, 2), v.alloc(2, 2)]
        cL = s.alloc(2, 2)
        M(f"""
        s_mov_b32 s{cL}, 0x{f2u(-LOG2E):08x}
        s_mov_b32 s{cL+1}, 0x{f2u(-LOG2E):08x}
        """)
        for q in range(4):
            z = o + 4 * q
            for k in range(3):
                I(f"v_pk_add_f32 v[{z}:{z+1}], v[{z}:{z+1}], v[{pr[k]+4*q}:{pr[k]+4*q+1}]")
                I(f"v_pk_add_f32 v[{z+2}:{z+3}], v[{z+2}:{z+3}], v[{pr[k]+4*q+2}:{pr[k]+4*q+3}]")
            M(f"""
            v_pk_mul_f32 v[{e}:{e+1}], v[{z}:{z+1}], s[{cL}:{cL+1}]
            v_pk_mul_f32 v[{e+2}:{e+3}], v[{z+2}:{z+3}], s[{cL}:{cL+1}]
            v_exp_f32 v{e}, v{e}
            v_exp_f32 v{e+1}, v{e+1}
            v_exp_f32 v{e+2}, v{e+2}
            v_exp_f32 v{e+3}, v{e+3}
            v_lshlrev_b32 v{u4}, 16, v{sv[q]}
            v_and_b32 v{u4+1}, 0xffff0000, v{sv[q]}
            v_lshlrev_b32 v{u4+2}, 16, v{sv[q]+1}
            v_and_b32 v{u4+3}, 0xffff0000, v{sv[q]+1}
            v_pk_add_f32 v[{e}:{e+1}], v[{e}:{e+1}], 1.0 op_sel_hi:[1,0]
            v_pk_add_f32 v[{e+2}:{e+3}], v[{e+2}:{e+3}], 1.0 op_sel_hi:[1,0]
            v_rcp_f32 v{e}, v{e}
            v_rcp_f32 v{e+1}, v{e+1}
            v_rcp_f32 v{e+2}, v{e+2}
            v_rcp_f32 v{e+3}, v{e+3}
            v_lshlrev_b32 v{x4}, 16, v{xv[q]}
            v_and_b32 v{x4+1}, 0xffff0000, v{xv[q]}
            v_lshlrev_b32 v{x4+2}, 16, v{xv[q]+1}
            v_and_b32 v{x4+3}, 0xffff0000, v{xv[q]+1}
            v_pk_mul_f32 v[{z}:{z+1}], v[{z}:{z+1}], v[{e}:{e+1}]
            v_pk_mul_f32 v[{z+2}:{z+3}], v[{z+2}:{z+3}], v[{e+2}:{e+3}]
            v_pk_fma_f32 v[{z}:{z+1}], v[{z}:{z+1}], v[{u4}:{u4+1}], v[{x4}:{x4+1}]
            v_pk_fma_f32 v[{z+2}:{z+3}], v[{z+2}:{z+3}], v[{u4+2}:{u4+3}], v[{x4+2}:{x4+3}]
            v_cvt_pk_bf16_f32 v{ob[q&1]}, v{z}, v{z+1}
            v_cvt_pk_bf16_f32 v{ob[q&1]+1}, v{z+2}, v{z+3}
            """)
            I(f"ds_write_b64 v{xq[q]}, v[{ob[q&1]}:{ob[q&1]+1}]")
        g.wait_lg_all()
        g.barrier()
        for e_ in range(2): tk = I(f"ds_read_b128 v[{xt[e_]}:{xt[e_]+3}], v{xw[e_]}")
        I(f"s_add_u32 s{T[0]}, s{sXo}, 8192")
        g.wait_lg_all()
        I(f"buffer_store_dwordx4 v[{xt[0]}:{xt[0]+3}], v{vo}, s[{self.rOut}:{self.rOut+3}], s{sXo} offen")
        I(f"buffer_store_dwordx4 v[{xt[1]}:{xt[1]+3}], v{vo}, s[{self.rOut}:{self.rOut+3}], s{T[0]} offen")

def wrap(body, lds=163840):
    hdr = open("cdna_kernels/" + NAME.replace("_kernel", "") + ".s.ref").read().split("; Override")[0]
    return hdr + f"""; @launch grid=(256,1,1) block=(256,1,1) lds={lds}
.amdgcn_target "amdgcn-amd-amdhsa--gfx950"
.text
.globl {NAME}
.p2align 8
.type {NAME},@function
{NAME}:
{body}
s_endpgm
.section .rodata,"a"
.p2align 6
.amdhsa_kernel {NAME}
  .amdhsa_next_free_vgpr 512
  .amdhsa_next_free_sgpr 102
  .amdhsa_accum_offset 256
  .amdhsa_group_segment_fixed_size 0
  .amdhsa_kernarg_size 120
  .amdhsa_user_sgpr_count 2
  .amdhsa_user_sgpr_kernarg_segment_ptr 1
  .amdhsa_system_sgpr_workgroup_id_x 1
  .amdhsa_float_denorm_mode_32 3
  .amdhsa_float_denorm_mode_16_64 3
.end_amdhsa_kernel
"""

if __name__ == "__main__":
    stop = sys.argv[1] if len(sys.argv) > 1 else None
    out = sys.argv[2] if len(sys.argv) > 2 else "k.s"
    k = Kern(stop=stop)
    open(out, "w").write(wrap(k.build()))
    print("written", out, "max v", k.v.maxused, "max s", k.s.maxused)
```

```python
import re

REG_RE = re.compile(r'^(-|\|)?(abs\()?(v|a|s)(\d+)\)?\|?$')
RNG_RE = re.compile(r'^(-)?(v|a|s)\[(\d+):(\d+)\]$')
TRANS = ('v_exp_f32', 'v_log_f32', 'v_rcp_f32', 'v_rsq_f32', 'v_sqrt_f32', 'v_sin_f32', 'v_cos_f32',
         'v_exp_f16', 'v_rcp_iflag_f32')

def regs_of(tok):
    tok = tok.strip()
    m = REG_RE.match(tok)
    if m: return [(m.group(3), int(m.group(4)))]
    m = RNG_RE.match(tok)
    if m: return [(m.group(2), i) for i in range(int(m.group(3)), int(m.group(4)) + 1)]
    if tok in ('vcc',): return [('vcc', 0)]
    if tok in ('vcc_lo', 'vcc_hi'): return [('vcc', 0)]
    if tok in ('exec', 'exec_lo', 'exec_hi'): return [('exec', 0)]
    if tok == 'm0': return [('m0', 0)]
    return []

class Ins:
    __slots__ = ('text', 'op', 'rd', 'wr', 'kind', 'passes', 'flags', 'ops')
    def __init__(self, text):
        self.text = text
        t = text.split(';')[0].strip()
        parts = t.split(None, 1)
        self.op = op = parts[0]
        rest = parts[1] if len(parts) > 1 else ''
        raw = [x.strip() for x in rest.split(',')] if rest else []
        ops = []; mods = []
        joined = rest
        joined = re.sub(r'\b(op_sel|op_sel_hi|neg_lo|neg_hi|quad_perm):\[[^\]]*\]', '', joined)
        raw = [x.strip() for x in joined.split(',')] if joined.strip() else []
        for i, x in enumerate(raw):
            w = x.split()
            if not w: continue
            ops.append(w[0]); mods += w[1:]
        self.ops = ops
        R = [regs_of(o) for o in ops]
        rd = []; wr = []; kind = 'other'; passes = 0; flags = set()
        dpp = ('_dpp' in op) or any(m.startswith(('row_', 'quad_perm', 'wave_')) for m in mods) or 'quad_perm' in rest
        if op.startswith('v_mfma'):
            kind = 'mfma'
            passes = 8 if '32x32x16' in op else 4 if '16x16x32' in op else None
            assert passes, op
            wr = R[0]; rd = R[1] + R[2] + R[3]
            self.flags = {'srcC': set(R[3]), 'srcAB': set(R[1] + R[2])}
        elif op.startswith('v_'):
            kind = 'valu'
            base = op.replace('_e32', '').replace('_e64', '').replace('_dpp', '').replace('_sdwa', '')
            if base in TRANS: flags.add('trans')
            if dpp: flags.add('dpp')
            if base.startswith('v_cmp'):
                wr = R[0]; rd = sum(R[1:], [])
            elif base in ('v_readlane_b32', 'v_readfirstlane_b32'):
                wr = R[0]; rd = sum(R[1:], []); flags.add('readlane')
            elif base == 'v_writelane_b32':
                wr = R[0]; rd = sum(R, []); flags.add('readlane')
            elif base in ('v_add_co_u32', 'v_sub_co_u32', 'v_subrev_co_u32', 'v_addc_co_u32', 'v_subb_co_u32'):
                wr = R[0] + R[1]; rd = sum(R[2:], [])
            elif base.startswith('v_permlane'):
                wr = R[0] + R[1]; rd = R[0] + R[1]; flags.add('permlane')
            elif base in ('v_fmac_f32', 'v_dot2c_f32_bf16', 'v_fmac_f16'):
                wr = R[0]; rd = sum(R, [])
            else:
                wr = R[0]; rd = sum(R[1:], [])
                if dpp: rd = rd + R[0]
            if base == 'v_cndmask_b32' and len(ops) == 3: rd = rd + [('vcc', 0)]
            rd = rd + [('exec', 0)]
        elif op.startswith('ds_'):
            kind = 'ds'
            if op.startswith(('ds_read', 'ds_bpermute', 'ds_permute', 'ds_swizzle')):
                wr = R[0]; rd = sum(R[1:], [])
            else:
                rd = sum(R, [])
        elif op.startswith(('buffer_', 'global_', 'flat_')):
            kind = 'vmem'
            islds = ('lds' in mods) or ('_lds_' in op)
            if op in ('buffer_wbl2', 'buffer_inv'):
                pass
            elif 'load' in op and not islds:
                wr = R[0]; rd = sum(R[1:], [])
            else:
                rd = sum(R, [])
                if islds: rd = rd + [('m0', 0)]; flags.add('ldsdma')
                if 'store' in op and ('x4' in op or 'x3' in op):
                    flags.add('widestore')
                    self.flags = None
                    data = R[0] if op.startswith('buffer_') else R[1]
                    flags.add(('data', tuple(data)))
            if 'atomic' in op and 'sc0' in mods:
                wr = R[0]
        elif op.startswith('s_'):
            kind = 'salu'
            if op.startswith(('s_cmp', 's_cbranch', 's_branch', 's_waitcnt', 's_barrier', 's_nop', 's_sleep',
                              's_setprio', 's_endpgm', 's_bitcmp')):
                rd = sum(R, [])
                if op.startswith('s_cbranch_vcc'): rd.append(('vcc', 0))
                if op.startswith('s_cbranch_exec'): rd.append(('exec', 0))
            elif 'saveexec' in op:
                wr = R[0] + [('exec', 0)]; rd = sum(R[1:], []) + [('exec', 0)]
            elif op.startswith(('s_load', 's_buffer_load', 's_memtime', 's_memrealtime')):
                kind = 'smem'; wr = R[0]; rd = sum(R[1:], [])
            else:
                wr = R[0] if R else []; rd = sum(R[1:], [])
        self.rd = set(rd); self.wr = set(wr); self.kind = kind; self.passes = passes
        if kind != 'mfma': self.flags = flags

def states(ins):
    if ins.op == 's_nop':
        return int(ins.ops[0], 0) + 1
    return 1

def need_dist(p, c):
    n = 0
    pw = p.wr
    if p.kind == 'valu':
        sg = {r for r in pw if r[0] in ('s', 'vcc')}
        vg = {r for r in pw if r[0] in ('v', 'a')}
        if sg:
            if c.kind == 'valu' and (sg & c.rd):
                n = max(n, 4 if 'readlane' in c.flags and False else 2)
                if 'readlane' in c.flags: n = max(n, 4)
            if c.kind == 'vmem' and (sg & c.rd): n = max(n, 5)
        if vg:
            if c.kind == 'valu':
                if 'readlane' in c.flags and (vg & c.rd): n = max(n, 1)
                if 'dpp' in c.flags and (vg & c.rd): n = max(n, 2)
                if 'permlane' in c.flags and (vg & c.rd): n = max(n, 2)
                if 'trans' in p.flags and 'trans' not in c.flags and (vg & c.rd): n = max(n, 1)
                if 'trans' in p.flags and 'trans' in c.flags and (vg & c.rd): n = max(n, 1)
            if c.kind == 'mfma' and (vg & c.rd): n = max(n, 2)
        if ('exec', 0) in pw:
            if c.kind == 'mfma': n = max(n, 4)
            if c.kind == 'valu' and 'dpp' in c.flags: n = max(n, 5)
    if p.kind == 'salu' and ('m0', 0) in pw and c.kind == 'vmem' and 'ldsdma' in c.flags:
        n = max(n, 1)
    if p.kind == 'vmem' and 'widestore' in p.flags:
        data = [f for f in p.flags if isinstance(f, tuple)][0][1]
        if set(data) & c.wr:
            n = max(n, 2 if c.kind == 'valu' else 1)
    if p.kind == 'mfma':
        D = p.wr; ps = p.passes
        if c.kind == 'mfma':
            cC = c.flags['srcC']; cAB = c.flags['srcAB']
            if D & cC:
                if D == cC and ps == c.passes: pass
                else: n = max(n, {4: 6, 8: 10}[ps])
            if D & cAB: n = max(n, {4: 8, 8: 12}[ps])
            if (D & c.wr) and not (D == c.wr and D == cC): n = max(n, {4: 6, 8: 10}[ps])
        elif c.kind in ('valu', 'vmem', 'ds'):
            if D & (c.rd | c.wr): n = max(n, {4: 8, 8: 12}[ps])
        if c.kind in ('valu', 'ds', 'vmem') and (p.flags['srcC'] & c.wr):
            n = max(n, {4: 3, 8: 7}[ps])
    return n

class G:
    def __init__(self):
        self.items = []
        self.vm = 0; self.vm_done = 0
        self.lg = 0; self.lg_done = 0
        self.nlab = 0
    def I(self, text):
        text = text.strip()
        ins = Ins(text)
        if ins.kind == 'ds' and self.lg - self.lg_done >= 15:
            self.wait_lg(self.lg - 11)
        if ins.kind == 'vmem':
            assert self.vm - self.vm_done < 62, "too many outstanding vmem ops"

        self.items.append(ins)
        if ins.kind == 'vmem' and ins.op not in ('buffer_wbl2', 'buffer_inv'):
            self.vm += 1; return self.vm
        if ins.kind == 'vmem':
            self.vm += 1; return self.vm
        if ins.kind == 'ds':
            self.lg += 1; return self.lg
        return None
    def M(self, text):
        r = None
        for ln in text.strip().split('\n'):
            ln = ln.strip()
            if not ln or ln.startswith(';'): continue
            if ln.endswith(':'): self.L(ln[:-1])
            else: r = self.I(ln)
        return r
    def L(self, name): self.items.append(('label', name))
    def variant(self, cond_text, body_alt, body_main):
        lin = self.label("L_va"); lout = self.label("L_vb")
        self.I(cond_text)
        g2 = G(); g2.vm, g2.vm_done, g2.lg, g2.lg_done, g2.nlab = self.vm, self.vm_done, self.lg, self.lg_done, self.nlab + 1000
        body_alt(g2)
        self.items.append(('ool', lin, g2.items, lout))
        body_main(self)
        assert g2.lg == self.lg and g2.lg_done == self.lg_done, (g2.lg, self.lg, g2.lg_done, self.lg_done)
        self.items.append(('softlabel', lout))
    def raw(self, text): self.items.append(('raw', text))
    def C(self, text): self.items.append(('raw', '; ' + text))
    def label(self, base):
        self.nlab += 1; return f"{base}_{self.nlab}"
    def wait_vm(self, t):
        if t is None or t <= self.vm_done: return
        n = self.vm - t
        if n <= 63:
            self.I(f"s_waitcnt vmcnt({n})"); self.vm_done = t
        else:
            self.I("s_waitcnt vmcnt(63)"); self.vm_done = max(self.vm_done, self.vm - 63)
            assert self.vm_done >= t
    def wait_lg(self, t):
        if t is None or t <= self.lg_done: return
        n = self.lg - t
        assert n >= 0
        if n <= 15:
            self.I(f"s_waitcnt lgkmcnt({n})"); self.lg_done = t
        else:
            self.I("s_waitcnt lgkmcnt(15)"); self.lg_done = self.lg - 15
            raise AssertionError("lgkm wait too deep")
    def wait_all(self):
        self.I("s_waitcnt vmcnt(0) lgkmcnt(0)"); self.vm_done = self.vm; self.lg_done = self.lg
    def wait_lg_all(self):
        self.I("s_waitcnt lgkmcnt(0)"); self.lg_done = self.lg
    def wait_vm_all(self):
        self.I("s_waitcnt vmcnt(0)"); self.vm_done = self.vm
    def barrier(self): self.I("s_barrier")
    def text(self):
        out = []
        pending = []
        self._emit(self.items, out, [], pending)
        tail = []
        while pending:
            lin, items, lout, hist = pending.pop(0)
            tail.append(lin + ':')
            self._emit(items, tail, hist, pending)
            tail.append(f"s_branch {lout}")
        if '@@OOL@@' in out:
            i = out.index('@@OOL@@'); out[i:i+1] = tail
        else:
            out += tail
        return '\n'.join(out) + '\n'

    def _emit(self, items, out, hist0, pending):
        hist = list(hist0)
        WIN = 24
        st = {'h': hist}
        def age_all(k):
            st['h'] = [(i, a + k) for (i, a) in st['h'] if a + k < WIN]
        def emit_nop(n):
            while n > 0:
                k = min(n, 16)
                out.append(f"s_nop {k-1}"); age_all(k); n -= k
        def flush_for_cf():
            worst = 0
            for ins, age in st['h']:
                if ins.kind == 'mfma': w = {4: 8, 8: 12}[ins.passes]
                elif ins.kind == 'valu': w = 5
                elif ins.kind == 'vmem' and 'widestore' in ins.flags: w = 2
                elif ins.kind == 'salu' and ('m0', 0) in ins.wr: w = 1
                else: w = 0
                worst = max(worst, w - age)
            emit_nop(worst)
        for it in items:
            if isinstance(it, tuple):
                if it[0] == 'label':
                    flush_for_cf(); out.append(it[1] + ':'); st['h'] = []
                elif it[0] == 'softlabel':
                    out.append(it[1] + ':')
                elif it[0] == 'ool':
                    out.append(f"s_cbranch_scc1 {it[1]}"); age_all(1)
                    pending.append((it[1], it[2], it[3], list(st['h'])))
                else: out.append(it[1])
                continue
            ins = it
            if ins.op.startswith(('s_cbranch', 's_branch')):
                need = 0
                for p, age in st['h']: need = max(need, need_dist(p, ins) - age)
                emit_nop(need)
                flush_for_cf()
                out.append(ins.text); age_all(1); continue
            need = 0
            for p, age in st['h']: need = max(need, need_dist(p, ins) - age)
            emit_nop(need)
            out.append(ins.text)
            age_all(states(ins))
            st['h'].append((ins, 0))

class RA:
    def __init__(self, kind, lo, hi):
        self.kind = kind; self.lo = lo; self.hi = hi; self.used = [False] * hi; self.maxused = lo
    def alloc(self, n=1, align=1):
        a = max(align, 1)
        i = self.lo
        while i + n <= self.hi:
            if i % a == 0 and not any(self.used[i:i + n]):
                for k in range(i, i + n): self.used[k] = True
                self.maxused = max(self.maxused, i + n)
                return i
            i += 1
        raise RuntimeError(f"out of {self.kind} regs (need {n})")
    def free(self, i, n=1):
        for k in range(i, i + n):
            assert self.used[k]; self.used[k] = False

def vr(i, n=1, k='v'):
    return f"{k}{i}" if n == 1 else f"{k}[{i}:{i+n-1}]"
def ar(i, n=1): return vr(i, n, 'a')
def sr(i, n=1): return vr(i, n, 's')
```

```python
import sys, math
from collections import deque
sys.path.insert(0, "gen")
from asmgen import *

NAME = "recurrent_scan__ssm_conv_s4__dense_activation_silu__prompt_kernel"
WS_XN = 0
WS_ST = 2 << 20
WS_FLN = WS_ST + 0x8000
WS_FH = WS_FLN + 0x1000
WS_FS = WS_FH + 0x1000
WS_S = 3 << 20
WS_H = 5 << 20
WS_DBG = 13 << 20
WS_SIZE = 16 << 20
LOG2E = 1.4426950408889634
SPIN = 0x20000

def f2u(x):
    import struct
    return struct.unpack('<I', struct.pack('<f', x))[0]
def hx(x): return f"0x{f2u(x):08x}"

class Kern:
    KR = 0; KRP = 4160; KRCH = 4 * 4160
    XY = 33280; XYCH = 28160; YOFF = 0; XOFF = 16384
    TAB = 33280; TABCH = 5120
    U = 43520; UCH = 4608
    EX = 52736
    TOP = 131072
    CS = 131072
    LNX = 131072

    def __init__(self, stop=None, prof=False, opt=None):
        self.g = G()
        self.prof = prof
        self.stamps = []
        self.stop = stop
        self.opt = opt or {}
        self.v = RA('v', 1, 256)
        self.a = RA('a', 0, 256)
        self.s = RA('s', 34, 102)
        self.s2 = RA('s', 6, 20)
        self.bg = deque()
        self.windows = []

    def I(self, t):
        r = self.g.I(t)
        if self.g.items[-1].kind == 'vmem':
            for w in self.windows:
                if w['active']: w['foreign'] += 1
        return r
    def M(self, text):
        r = None
        for ln in text.strip().split('\n'):
            ln = ln.strip()
            if not ln or ln.startswith(';'): continue
            r = self.I(ln)
        return r
    def wvm(self, t):
        g = self.g
        if t is None or t <= g.vm_done: return
        n = g.vm - t
        for w in self.windows:
            if w['active'] and t < w['first']: n -= 8
            if t == w['last']: n -= w['foreign']
        assert 0 <= n <= 63, n
        g.I(f"s_waitcnt vmcnt({n})")
        g.vm_done = max(g.vm_done, t)
    def win_open(self):
        g = self.g
        for w in self.windows: w['active'] = False
        first = g.vm + 1; g.vm += 8
        self.windows.append(dict(first=first, last=g.vm, foreign=0, active=True))
        return g.vm
    def win_close(self):
        for w in self.windows: w['active'] = False
    def pump(self, n=1):
        for _ in range(n):
            if self.bg: self.bg.popleft()()
    def drain(self):
        while self.bg: self.bg.popleft()()

    def stamp(self, name):
        if not self.prof: return
        g = self.g
        k = len(self.stamps)
        self.stamps.append(name)
        P = self.sP2
        if k == 0:
            g.I(f"s_memrealtime s[{P}:{P+1}]")
            g.I("s_waitcnt lgkmcnt(0)")
            g.I(f"v_writelane_b32 v{self.vStamp}, s{P}, 62")
        g.I(f"s_memtime s[{P}:{P+1}]")
        g.I("s_waitcnt lgkmcnt(0)"); g.lg_done = g.lg
        g.I(f"v_writelane_b32 v{self.vStamp}, s{P}, {k}")
        if name == "end":
            g.I(f"s_memrealtime s[{P}:{P+1}]")
            g.I("s_waitcnt lgkmcnt(0)")
            g.I(f"v_writelane_b32 v{self.vStamp}, s{P}, 63")

    def finish(self):
        g = self.g
        if self.prof:
            g.wait_all()
            self.stamp("end")
            v = self.v
            a = v.alloc()
            g.I(f"s_lshl_b32 s{self.sT[0]}, s2, 10")
            g.I(f"s_lshl_b32 s{self.sT[1]}, s{self.sV}, 8")
            g.I(f"s_add_u32 s{self.sT[0]}, s{self.sT[0]}, s{self.sT[1]}")
            g.I(f"s_add_u32 s{self.sT[0]}, s{self.sT[0]}, {WS_DBG + (2 << 20)}")
            g.I(f"v_lshlrev_b32 v{a}, 2, v{self.vLane}")
            g.I(f"buffer_store_dword v{self.vStamp}, v{a}, s[{self.rWS}:{self.rWS+3}], s{self.sT[0]} offen")
        g.I("s_endpgm")
        g.raw("@@OOL@@")
        g.raw("L_codeend:")
        g.raw("L_end:")
        return g.text()

    def build(self):
        g = self.g; v = self.v; s = self.s
        self.pX, self.pAre, self.pAim, self.pBre, self.pBim, self.pCre, self.pCim, self.pLdt = 4, 6, 8, 10, 12, 14, 16, 18
        self.pDsk, self.pBx, self.pW1, self.pW2 = 20, 22, 24, 26
        self.pOut, self.pDbg, self.pWs = 28, 30, 32
        self.rX = s.alloc(4, 4); self.rW1 = s.alloc(4, 4); self.rW2 = s.alloc(4, 4)
        self.rWS = s.alloc(4, 4)
        self.sC = s.alloc(); self.sQ = s.alloc(); self.sI = s.alloc(); self.sJ = s.alloc(); self.sV = s.alloc()
        self.sLb = s.alloc(); self.sSp = s.alloc()
        self.sNon = s.alloc(2, 2)
        self.sT = [s.alloc() for _ in range(8)]
        self.sB = [s.alloc() for _ in range(2)]
        self.sP = s.alloc(2, 2); self.sP2 = s.alloc(2, 2); self.sEx = s.alloc(2, 2)
        self.vLane = v.alloc()
        if self.prof: self.vStamp = v.alloc()
        self.prologue()
        self.ln_phase()
        self.gemm1()
        if self.stop == 'g1': return self.finish()
        self.kgen()
        self.conv()
        if self.stop == 'cv': return self.finish()
        self.gemm2()
        return self.finish()

    def prologue(self):
        g = self.g; I = self.I; M = self.M; v = self.v; s = self.s; T = self.sT
        sC, sQ, sI, sJ, sV = self.sC, self.sQ, self.sI, self.sJ, self.sV
        L = self.vLane
        vt = v.alloc()
        g.I("s_cmp_ge_u32 s2, 256"); g.raw("s_cbranch_scc1 L_end")
        self.stamp("entry")
        M(f"""
        s_load_dwordx16 s[4:19], s[0:1], 0
        s_load_dwordx8 s[20:27], s[0:1], 64
        s_load_dwordx4 s[28:31], s[0:1], 96
        s_load_dwordx2 s[32:33], s[0:1], 112
        s_and_b32 s{sC}, s2, 7
        s_lshr_b32 s{sQ}, s2, 3
        s_lshr_b32 s{T[0]}, s{sC}, 1
        s_lshl_b32 s{T[0]}, s{T[0]}, 2
        s_and_b32 s{sI}, s{sQ}, 3
        s_add_u32 s{sI}, s{sI}, s{T[0]}
        s_lshr_b32 s{T[1]}, s{sQ}, 2
        s_and_b32 s{T[0]}, s{sC}, 1
        s_mul_i32 s{sJ}, s{T[0]}, 7
        s_add_u32 s{sJ}, s{sJ}, s{T[1]}
        s_lshl_b32 s{T[0]}, s{T[0]}, 3
        s_add_u32 s{T[0]}, s{T[0]}, s{T[1]}
        s_lshl_b32 s{self.sLb}, s{sI}, 4
        s_add_u32 s{self.sLb}, s{self.sLb}, s{T[0]}
        s_cmp_eq_u32 s{T[1]}, 7
        s_cselect_b32 s{self.sSp}, 1, 0
        v_and_b32 v{L}, 63, v0
        v_lshrrev_b32 v{vt}, 6, v0
        v_readfirstlane_b32 s{sV}, v{vt}
        """)
        v.free(vt)
        self.vL16 = v.alloc(); self.vXo = [v.alloc(), v.alloc()]; self.vWo = v.alloc()
        t0 = v.alloc(); t1 = v.alloc(); t2 = v.alloc()
        M(f"""
        v_lshlrev_b32 v{self.vL16}, 4, v{L}
        v_lshrrev_b32 v{t0}, 3, v{L}
        v_lshlrev_b32 v{t0}, 10, v{t0}
        v_and_b32 v{t1}, 7, v{L}
        v_lshrrev_b32 v{t2}, 4, v{L}
        v_xor_b32 v{t1}, v{t1}, v{t2}
        v_lshlrev_b32 v{t1}, 4, v{t1}
        v_add_u32 v{self.vXo[0]}, v{t0}, v{t1}
        v_xor_b32 v{self.vXo[1]}, 64, v{self.vXo[0]}
        v_mul_u32_u24 v{t0}, 3584, v{t2}
        v_and_b32 v{t1}, 15, v{L}
        v_lshlrev_b32 v{t2}, 2, v{t2}
        v_xor_b32 v{t1}, v{t1}, v{t2}
        v_lshlrev_b32 v{t1}, 4, v{t1}
        v_add_u32 v{self.vWo}, v{t0}, v{t1}
        """)
        v.free(t0); v.free(t1); v.free(t2)
        self.sXlds = s.alloc(); self.sXsrc = s.alloc(); self.sWsrc = s.alloc()
        self.sWf = s.alloc(); self.sWl = s.alloc()
        self.sD0 = s.alloc(); self.sCh = s.alloc(); self.sHh = s.alloc(); self.sD = s.alloc()
        self.sM = s.alloc(); self.sN = s.alloc(); self.sW2src = s.alloc(); self.sW2lds = s.alloc()
        M(f"""
        s_lshl_b32 s{self.sXlds}, s{sV}, 12
        s_lshl_b32 s{self.sXsrc}, s{sI}, 17
        s_lshl_b32 s{T[0]}, s{sV}, 15
        s_add_u32 s{self.sXsrc}, s{self.sXsrc}, s{T[0]}
        s_mul_i32 s{self.sWsrc}, s{sV}, {16 * 3584}
        s_lshl_b32 s{T[0]}, s{sJ}, 8
        s_add_u32 s{self.sWsrc}, s{self.sWsrc}, s{T[0]}
        s_lshr_b32 s{self.sWf}, s{sV}, 1
        s_and_b32 s{self.sWl}, s{sV}, 1
        s_lshl_b32 s{self.sD0}, s{sC}, 6
        s_lshl_b32 s{T[0]}, s{sQ}, 1
        s_add_u32 s{self.sD0}, s{self.sD0}, s{T[0]}
        s_lshr_b32 s{self.sCh}, s{sV}, 1
        s_and_b32 s{self.sHh}, s{sV}, 1
        s_add_u32 s{self.sD}, s{self.sD0}, s{self.sCh}
        s_and_b32 s{self.sM}, s{sQ}, 3
        s_lshl_b32 s{T[0]}, s{sC}, 2
        s_add_u32 s{self.sM}, s{self.sM}, s{T[0]}
        s_lshr_b32 s{self.sN}, s{sQ}, 2
        s_mul_i32 s{self.sW2src}, s{sV}, {448 * 1024}
        s_lshl_b32 s{T[0]}, s{self.sN}, 7
        s_add_u32 s{self.sW2src}, s{self.sW2src}, s{T[0]}
        s_lshl_b32 s{self.sW2lds}, s{sV}, 13
        """)
        self.sRot1 = s.alloc(); self.sRot2 = s.alloc(); self.sXc = s.alloc(); self.sWc = s.alloc(); self.sW2r = s.alloc()
        M(f"""
        s_lshr_b32 s{T[0]}, s{sQ}, 2
        s_and_b32 s{T[1]}, s{sQ}, 3
        s_lshl_b32 s{T[1]}, s{T[1]}, 1
        s_add_u32 s{T[0]}, s{T[0]}, s{T[1]}
        s_and_b32 s{self.sRot1}, s{T[0]}, 7
        s_sub_u32 s{T[1]}, s{T[0]}, 7
        s_cmp_ge_u32 s{T[0]}, 7
        s_cselect_b32 s{self.sRot2}, s{T[1]}, s{T[0]}
        """)
        self.g1_addr()
        I("s_waitcnt lgkmcnt(0)")
        self.stamp("kernarg")

    def srd(self, r, p, sz):
        self.M(f"""
        s_mov_b32 s{r}, s{p}
        s_and_b32 s{r+1}, s{p+1}, 0xffff
        s_mov_b32 s{r+2}, {sz}
        s_mov_b32 s{r+3}, 0x20000
        """)

    def ring_items(self, c):
        slot = (c % 4) * 32768; B = self.sB
        it = []
        for u in range(4):
            def f(gg, u=u):
                if u == 0:
                    gg.I(f"s_add_u32 s{self.sXc}, s{self.sRot1}, {c}")
                    gg.I(f"s_and_b32 s{self.sXc}, s{self.sXc}, 7")
                    gg.I(f"s_mul_i32 s{self.sWc}, s{self.sXc}, {64 * 3584}")
                    gg.I(f"s_add_u32 s{self.sWc}, s{self.sWc}, s{self.sWsrc}")
                    gg.I(f"s_lshl_b32 s{self.sXc}, s{self.sXc}, 7")
                    gg.I(f"s_add_u32 s{self.sXc}, s{self.sXc}, s{self.sXsrc}")
                gg.I(f"s_add_u32 m0, s{self.sXlds}, {slot + u * 1024}")
                gg.I(f"s_add_u32 s{B[0]}, s{self.sXc}, {u * 8192}")
                return gg.I(f"buffer_load_dwordx4 v{self.vXo[u & 1]}, s[{self.rX}:{self.rX+3}], s{B[0]} offen lds")
            it.append(f)
        for u in range(4):
            def f(gg, u=u):
                gg.I(f"s_add_u32 m0, s{self.sXlds}, {slot + 16384 + u * 1024}")
                gg.I(f"s_add_u32 s{B[0]}, s{self.sWc}, {4 * u * 3584}")
                return gg.I(f"buffer_load_dwordx4 v{self.vWo}, s[{self.rW1}:{self.rW1+3}], s{B[0]} offen lds")
            it.append(f)
        return it
    def w2_items(self, r, ldsbase):
        B = self.sB; it = []
        self.w2_lds[r] = ldsbase
        for c in range(8):
            def f(gg, c=c):
                if c == 0:
                    gg.I(f"s_add_u32 s{self.sW2r}, s{self.sRot2}, {r}")
                    gg.I(f"s_sub_u32 s{B[0]}, s{self.sW2r}, 7")
                    gg.I(f"s_cmp_ge_u32 s{self.sW2r}, 7")
                    gg.I(f"s_cselect_b32 s{self.sW2r}, s{B[0]}, s{self.sW2r}")
                    gg.I(f"s_lshl_b32 s{self.sW2r}, s{self.sW2r}, 16")
                    gg.I(f"s_add_u32 s{self.sW2r}, s{self.sW2r}, s{self.sW2src}")
                gg.I(f"s_add_u32 m0, s{self.sW2lds}, {ldsbase + c * 1024}")
                gg.I(f"s_add_u32 s{B[0]}, s{self.sW2r}, {c * 8192}")
                return gg.I(f"buffer_load_dwordx4 v{self.vW2o}, s[{self.rW2}:{self.rW2+3}], s{B[0]} offen lds")
            it.append(f)
        return it
    def issue_now(self, items):
        t = None
        for f in items:
            t = f(self.g)
            for w in self.windows:
                if w['active']: w['foreign'] += 1
        return t
    def w2_bg_issue(self, r, ldsbase, after=None):
        its = self.w2_items(r, ldsbase)
        if after is not None:
            self.bg.append(lambda: self.g.wait_lg(self.tl_w2[after]))
        for k, f in enumerate(its):
            def e(f=f, k=k):
                t = self.issue_now([f])
                if k == 7: self.tk_w2[r] = t
            self.bg.append(e)
    def w2_read_items(self, r):
        base = self.w2_lds[r]; it = []
        half = base // 65536
        for st in range(4):
            for dt in range(2):
                for hf in range(2):
                    a = self.aW2 + (r * 4 + st) * 8 + dt * 4 + 2 * hf
                    off = base - half * 65536 + (16 * st + 4 * hf) * 128
                    def f(gg, a=a, off=off, dt=dt):
                        return gg.I(f"ds_read_b64_tr_b16 a[{a}:{a+1}], v{self.vTa[half][dt]} offset:{off}")
                    it.append(f)
        return it
    def w2_bg_read(self, r):
        its = self.w2_read_items(r)
        def w(): self.wvm(self.tk_w2[r])
        self.bg.append(w)
        for k in range(0, 16, 2):
            def e(k=k):
                its[k](self.g); t = its[k + 1](self.g)
                if k == 14: self.tl_w2[r] = t
            self.bg.append(e)

    def w2_addr(self):
        I = self.I; M = self.M; v = self.v; T = self.sT; L = self.vLane
        self.vW2o = v.alloc(); self.vTa = [[v.alloc(), v.alloc()] for _ in range(3)]
        self.tk_w2 = {}; self.tl_w2 = {}; self.w2_lds = {}
        t0 = v.alloc(); t1 = v.alloc(); t2 = v.alloc()
        M(f"""
        v_lshrrev_b32 v{t0}, 3, v{L}
        v_lshlrev_b32 v{t0}, 10, v{t0}
        v_lshrrev_b32 v{t1}, 4, v{L}
        v_and_b32 v{t1}, 1, v{t1}
        v_lshlrev_b32 v{t1}, 2, v{t1}
        v_and_b32 v{t2}, 7, v{L}
        v_xor_b32 v{t1}, v{t1}, v{t2}
        v_lshlrev_b32 v{t1}, 4, v{t1}
        v_add_u32 v{self.vW2o}, v{t0}, v{t1}
        v_lshrrev_b32 v{t0}, 5, v{L}
        v_lshlrev_b32 v{t0}, 3, v{t0}
        v_lshrrev_b32 v{t1}, 2, v{L}
        v_and_b32 v{t1}, 3, v{t1}
        v_add_u32 v{t0}, v{t0}, v{t1}
        v_lshlrev_b32 v{t0}, 7, v{t0}
        v_lshrrev_b32 v{t2}, 4, v{L}
        v_and_b32 v{t2}, 1, v{t2}
        v_lshlrev_b32 v{t2}, 5, v{t2}
        v_add_u32 v{t0}, v{t0}, v{t2}
        v_and_b32 v{t2}, 3, v{L}
        v_lshlrev_b32 v{t2}, 3, v{t2}
        v_add_u32 v{t0}, v{t0}, v{t2}
        v_add_u32 v{t0}, s{self.sW2lds}, v{t0}
        v_lshrrev_b32 v{t1}, 1, v{t1}
        s_lshr_b32 s{T[0]}, s{self.sV}, 1
        v_xor_b32 v{t1}, s{T[0]}, v{t1}
        v_lshlrev_b32 v{t1}, 6, v{t1}
        v_add_u32 v{self.vTa[0][0]}, v{t0}, v{t1}
        v_xor_b32 v{t1}, 64, v{t1}
        v_add_u32 v{self.vTa[0][1]}, v{t0}, v{t1}
        """)
        for h in (1, 2):
            for d in range(2): I(f"v_add_u32 v{self.vTa[h][d]}, {h * 65536}, v{self.vTa[0][d]}")
        for r in (t0, t1, t2): v.free(r)
        self.aW2 = self.a.alloc(224, 4)

    def g1_addr(self):
        I = self.I; M = self.M; v = self.v; T = self.sT; L = self.vLane
        sWf, sWl = self.sWf, self.sWl
        self.vXa = vXa = [[v.alloc() for _ in range(4)] for _ in range(2)]
        self.vWa = vWa = [[v.alloc() for _ in range(2)] for _ in range(2)]
        t0 = v.alloc(); t1 = v.alloc(); t2 = v.alloc()
        M(f"""
        v_and_b32 v{t0}, 31, v{L}
        v_lshrrev_b32 v{t1}, 1, v{t0}
        v_and_b32 v{t1}, 7, v{t1}
        v_lshrrev_b32 v{t2}, 5, v{L}
        v_xor_b32 v{t1}, v{t1}, v{t2}
        s_lshl_b32 s{T[0]}, s{sWl}, 13
        v_lshlrev_b32 v{t0}, 7, v{t0}
        v_add_u32 v{t0}, s{T[0]}, v{t0}
        """)
        for st in range(4):
            M(f"""
            v_xor_b32 v{t2}, {2*st}, v{t1}
            v_lshlrev_b32 v{t2}, 4, v{t2}
            v_add_u32 v{vXa[0][st]}, v{t0}, v{t2}
            v_add_u32 v{vXa[1][st]}, 0x10000, v{vXa[0][st]}
            """)
        M(f"""
        v_lshrrev_b32 v{t0}, 5, v{L}
        v_lshlrev_b32 v{t0}, 3, v{t0}
        v_lshrrev_b32 v{t1}, 2, v{L}
        v_and_b32 v{t1}, 3, v{t1}
        v_add_u32 v{t0}, v{t0}, v{t1}
        v_lshlrev_b32 v{t0}, 8, v{t0}
        v_lshrrev_b32 v{t2}, 4, v{L}
        v_and_b32 v{t2}, 1, v{t2}
        v_lshlrev_b32 v{t2}, 5, v{t2}
        v_add_u32 v{t0}, v{t0}, v{t2}
        v_and_b32 v{t2}, 3, v{L}
        v_lshlrev_b32 v{t2}, 3, v{t2}
        v_add_u32 v{t0}, v{t0}, v{t2}
        v_add_u32 v{t0}, 16384, v{t0}
        s_lshl_b32 s{T[0]}, s{sWf}, 1
        """)
        for ftl in range(2):
            M(f"""
            s_xor_b32 s{T[1]}, s{sWl}, {ftl}
            s_add_u32 s{T[1]}, s{T[0]}, s{T[1]}
            v_xor_b32 v{t2}, s{T[1]}, v{t1}
            v_lshlrev_b32 v{t2}, 6, v{t2}
            v_add_u32 v{vWa[0][ftl]}, v{t0}, v{t2}
            v_add_u32 v{vWa[1][ftl]}, 0x10000, v{vWa[0][ftl]}
            """)
        self.sel = sel = v.alloc(4, 4)
        M(f"""
        v_and_b32 v{t0}, 15, v{L}
        v_lshrrev_b32 v{t1}, 4, v{L}
        v_and_b32 v{t1}, 1, v{t1}
        v_cmp_eq_u32 vcc, v{t0}, v{t1}
        v_mov_b32 v{t2}, 0x3f803f80
        v_cndmask_b32 v{sel}, 0, v{t2}, vcc
        v_mov_b32 v{sel+1}, v{sel}
        v_mov_b32 v{sel+2}, v{sel}
        v_mov_b32 v{sel+3}, v{sel}
        """)
        for r in (t0, t1, t2): v.free(r)

    def kg_expand_addr(self):
        I = self.I; M = self.M; v = self.v
        self.xa = [v.alloc() for _ in range(12)]
        f0 = v.alloc(); f1 = v.alloc(); jb = v.alloc()
        M(f"""
        v_lshlrev_b32 v{jb}, 3, v0
        v_sub_u32 v{jb}, 2048, v{jb}
        """)
        for k in range(0, 12, 2):
            e0 = k - 4; e1 = k - 3
            M(f"""
            v_add_u32 v{f0}, {-e0}, v{jb}
            v_add_u32 v{f1}, {-e1}, v{jb}
            v_min_u32 v{f0}, 2048, v{f0}
            v_min_u32 v{f1}, 2048, v{f1}
            v_cvt_f32_u32 v{f0}, v{f0}
            v_cvt_f32_u32 v{f1}, v{f1}
            v_cvt_pk_bf16_f32 v{f0}, v{f0}, v{f1}
            v_and_b32 v{f1}, 0xffff0000, v{f0}
            v_lshlrev_b32 v{f0}, 16, v{f0}
            v_cvt_u32_f32 v{f0}, v{f0}
            v_cvt_u32_f32 v{f1}, v{f1}
            v_lshlrev_b32 v{f0}, 1, v{f0}
            v_lshlrev_b32 v{f1}, 1, v{f1}
            v_add_u32 v{self.xa[k]}, {self.TAB + 2}, v{f0}
            v_add_u32 v{self.xa[k+1]}, {self.TAB + 2}, v{f1}
            """)
        v.free(f0); v.free(f1); v.free(jb)

    def nonce_issue(self):
        v = self.v
        self.vNon = v.alloc(2, 2); ta = v.alloc()
        self.I(f"v_mov_b32 v{ta}, 0")
        self.tk_non = self.I(f"global_load_dwordx2 v[{self.vNon}:{self.vNon+1}], v{ta}, s[{self.pDbg}:{self.pDbg+1}] sc1")
        self.vNonA = ta
    def nonce_check(self):
        g = self.g; v = self.v
        tv = self.vNon; ta = self.vNonA
        lp = g.label("L_np"); dn = g.label("L_nd")
        self.wvm(self.tk_non)
        g.M(f"""
        v_readfirstlane_b32 s{self.sNon}, v{tv}
        v_readfirstlane_b32 s{self.sNon+1}, v{tv+1}
        s_mov_b32 s{self.sT[1]}, 0
        s_cmp_lg_u32 s{self.sNon}, 0
        s_cbranch_scc1 {dn}
        """)
        g.L(lp)
        g.raw(f"global_load_dwordx2 v[{tv}:{tv+1}], v{ta}, s[{self.pDbg}:{self.pDbg+1}] sc1")
        g.M(f"""
        s_waitcnt vmcnt(0)
        v_readfirstlane_b32 s{self.sNon}, v{tv}
        v_readfirstlane_b32 s{self.sNon+1}, v{tv+1}
        s_add_u32 s{self.sT[1]}, s{self.sT[1]}, 1
        s_cmp_lg_u32 s{self.sNon}, 0
        s_cbranch_scc1 {dn}
        s_cmp_gt_u32 s{self.sT[1]}, {SPIN}
        s_cbranch_scc1 {dn}
        s_sleep 2
        s_branch {lp}
        """)
        g.L(dn)
        v.free(tv, 2); v.free(ta)
    def poll_issue(self, addr_v, n=1, stride=512):
        v = self.v
        regs = [v.alloc(2, 2) for _ in range(n)]
        t = None
        for k, r in enumerate(regs):
            t = self.I(f"buffer_load_dwordx2 v[{r}:{r+1}], v{addr_v}, s[{self.rWS}:{self.rWS+3}], 0 offen offset:{k*stride} sc1")
        return (regs, t, addr_v, stride)
    def poll_check(self, h):
        g = self.g; v = self.v
        regs, t, addr_v, stride = h
        N = self.sNon; P = self.sP
        lp = g.label("L_pp"); dn = g.label("L_pd")
        def cmp():
            g.I(f"v_cmp_eq_u64 vcc, s[{N}:{N+1}], v[{regs[0]}:{regs[0]+1}]")
            for r in regs[1:]:
                g.I(f"v_cmp_eq_u64 s[{P}:{P+1}], s[{N}:{N+1}], v[{r}:{r+1}]")
                g.I(f"s_and_b64 vcc, vcc, s[{P}:{P+1}]")
            g.I("s_cmp_eq_u64 vcc, exec")
        self.wvm(t)
        cmp()
        g.I(f"s_cbranch_scc1 {dn}")
        g.I(f"s_mov_b32 s{self.sT[1]}, 0")
        g.L(lp)
        for k, r in enumerate(regs):
            g.raw(f"buffer_load_dwordx2 v[{r}:{r+1}], v{addr_v}, s[{self.rWS}:{self.rWS+3}], 0 offen offset:{k*stride} sc1")
        g.I("s_waitcnt vmcnt(0)")
        cmp()
        g.M(f"""
        s_cbranch_scc1 {dn}
        s_add_u32 s{self.sT[1]}, s{self.sT[1]}, 1
        s_cmp_gt_u32 s{self.sT[1]}, {SPIN}
        s_cbranch_scc1 {dn}
        s_sleep 1
        s_branch {lp}
        """)
        g.L(dn)
        for r in regs: v.free(r, 2)
        v.free(addr_v)
    def set_flag(self, base, idx_sgpr):
        g = self.g; v = self.v
        tv = v.alloc(2, 2); ta = v.alloc()
        lab = g.label("L_sf")
        g.M(f"""
        s_cmp_lg_u32 s{self.sV}, 0
        s_cbranch_scc1 {lab}
        s_lshl_b32 s{self.sT[1]}, s{idx_sgpr}, 3
        s_add_u32 s{self.sT[1]}, s{self.sT[1]}, {base}
        v_mov_b32 v{ta}, s{self.sT[1]}
        v_mov_b32 v{tv}, s{self.sNon}
        v_mov_b32 v{tv+1}, s{self.sNon+1}
        s_mov_b64 s[{self.sEx}:{self.sEx+1}], exec
        s_mov_b64 exec, 1
        """)
        g.raw(f"buffer_store_dwordx2 v[{tv}:{tv+1}], v{ta}, s[{self.rWS}:{self.rWS+3}], 0 offen sc1")
        g.I(f"s_mov_b64 exec, s[{self.sEx}:{self.sEx+1}]")
        g.L(lab)
        v.free(tv, 2); v.free(ta)

    def ln_phase(self):
        g = self.g; I = self.I; M = self.M; v = self.v; T = self.sT
        sV = self.sV
        self.srd(self.rX, self.pX, 2 << 20)
        self.lnx = [v.alloc(4, 4), v.alloc(4, 4)]
        xa, xb = self.lnx
        self.sRow = self.s.alloc()
        M(f"""
        s_lshl_b32 s{self.sRow}, s{self.sLb}, 3
        s_lshl_b32 s{T[0]}, s{sV}, 1
        s_add_u32 s{self.sRow}, s{self.sRow}, s{T[0]}
        s_lshl_b32 s{T[0]}, s{self.sRow}, 10
        """)
        I(f"buffer_load_dwordx4 v[{xa}:{xa+3}], v{self.vL16}, s[{self.rX}:{self.rX+3}], s{T[0]} offen")
        self.tk_lnx = I(f"buffer_load_dwordx4 v[{xb}:{xb+3}], v{self.vL16}, s[{self.rX}:{self.rX+3}], s{T[0]} offen offset:1024")
        self.srd(self.rW1, self.pW1, 512 * 1792 * 2)
        self.tk_chunk = {}
        self.tk_chunk[0] = self.issue_now(self.ring_items(0))
        self.srd(self.rWS, self.pWs, WS_SIZE)
        self.srd(self.rW2, self.pW2, 512 * 1792 * 2)
        lab = g.label("L_non")
        tv = v.alloc(2, 2); ta = v.alloc()
        g.M(f"""
        s_or_b32 s{T[0]}, s2, s{sV}
        s_cmp_lg_u32 s{T[0]}, 0
        s_cbranch_scc1 {lab}
        s_memrealtime s[{self.sP2}:{self.sP2+1}]
        s_waitcnt lgkmcnt(0)
        s_or_b32 s{self.sP2}, s{self.sP2}, 1
        v_mov_b32 v{tv}, s{self.sP2}
        v_mov_b32 v{tv+1}, s{self.sP2+1}
        v_mov_b32 v{ta}, 0
        s_mov_b64 s[{self.sEx}:{self.sEx+1}], exec
        s_mov_b64 exec, 1
        """)
        g.raw(f"global_store_dwordx2 v{ta}, v[{tv}:{tv+1}], s[{self.pDbg}:{self.pDbg+1}] sc1")
        g.I(f"s_mov_b64 exec, s[{self.sEx}:{self.sEx+1}]")
        g.L(lab)
        v.free(tv, 2); v.free(ta)
        self.tk_chunk[1] = self.issue_now(self.ring_items(1))
        self.kg_expand_addr()
        self.w2_addr()
        if self.opt.get('codepf', True): self.code_prefetch()
        self.tk_chunk[2] = self.issue_now(self.ring_items(2))
        self.stamp("issued")

    def ln_stream(self):
        v = self.v; s = self.s; T = self.sT; LNX = self.LNX
        xa, xb = self.lnx; X = [xa, xb]
        p1a, p1b, p2 = [], [], []
        def add(lst, text):
            for ln in text.strip().split('\n'):
                ln = ln.strip()
                if ln: lst.append(lambda gg, ln=ln: gg.I(ln))
        ones = s.alloc(); sm = [s.alloc() for _ in range(4)]
        s1 = [v.alloc(), v.alloc()]; s2 = [v.alloc(), v.alloc()]
        add(p1a, f"s_mov_b32 s{ones}, 0x3f803f80")
        for r in range(2):
            add(p1a, f"v_dot2_f32_bf16 v{s1[r]}, v{X[r]}, s{ones}, 0")
            add(p1a, f"v_dot2_f32_bf16 v{s2[r]}, v{X[r]}, v{X[r]}, 0")
        for k in range(1, 4):
            for r in range(2):
                add(p1a, f"v_dot2_f32_bf16 v{s1[r]}, v{X[r]+k}, s{ones}, v{s1[r]}")
                add(p1a, f"v_dot2_f32_bf16 v{s2[r]}, v{X[r]+k}, v{X[r]+k}, v{s2[r]}")
        red = [s1[0], s2[0], s1[1], s2[1]]
        for mod in ("row_shr:1 row_mask:0xf bank_mask:0xf bound_ctrl:0", "row_shr:2 row_mask:0xf bank_mask:0xf bound_ctrl:0",
                    "row_shr:4 row_mask:0xf bank_mask:0xf bound_ctrl:0", "row_shr:8 row_mask:0xf bank_mask:0xf bound_ctrl:0",
                    "row_bcast:15 row_mask:0xa bank_mask:0xf", "row_bcast:31 row_mask:0xc bank_mask:0xf"):
            for r in red: add(p1a, f"v_add_f32_dpp v{r}, v{r}, v{r} {mod}")
        for r, sg in zip(red, sm): add(p1a, f"v_readlane_b32 s{sg}, v{r}, 63")
        st = [v.alloc(4, 4), v.alloc(4, 4)]
        mf = [v.alloc(), v.alloc()]; tm = [v.alloc(), v.alloc()]; tn = [v.alloc(), v.alloc()]
        inv512 = hx(1.0 / 512)
        seq = lambda r: f"""
            v_mov_b32 v{tm[r]}, s{sm[2*r]}
            v_mul_f32 v{tm[r]}, {inv512}, v{tm[r]}
            v_mov_b32 v{tn[r]}, s{sm[2*r+1]}
            v_mul_f32 v{tn[r]}, {inv512}, v{tn[r]}
            v_fma_f32 v{tn[r]}, -v{tm[r]}, v{tm[r]}, v{tn[r]}
            v_max_f32 v{tn[r]}, 0, v{tn[r]}
            v_cvt_pk_bf16_f32 v{tm[r]}, v{tm[r]}, v{tm[r]}
            v_and_b32 v{mf[r]}, 0xffff0000, v{tm[r]}
            v_xor_b32 v{st[r]}, 0x80008000, v{tm[r]}
            v_cvt_pk_bf16_f32 v{tn[r]}, v{tn[r]}, v{tn[r]}
            v_and_b32 v{tn[r]}, 0xffff0000, v{tn[r]}
            v_add_f32 v{tn[r]}, {hx(1e-5)}, v{tn[r]}
            v_cvt_pk_bf16_f32 v{tn[r]}, v{tn[r]}, v{tn[r]}
            v_and_b32 v{tn[r]}, 0xffff0000, v{tn[r]}
            v_sqrt_f32 v{tn[r]}, v{tn[r]}
            v_cvt_pk_bf16_f32 v{tn[r]}, v{tn[r]}, v{tn[r]}
            v_and_b32 v{tn[r]}, 0xffff0000, v{tn[r]}
            v_rcp_f32 v{st[r]+1}, v{tn[r]}
            """.strip().split('\n')
        for la, lb_ in zip(seq(0), seq(1)):
            add(p1a, la); add(p1a, lb_)
        ta = v.alloc()
        pst = []
        add(pst, f"""
            v_mov_b32 v{st[0]+2}, s{self.sNon}
            v_mov_b32 v{st[0]+3}, s{self.sNon+1}
            v_mov_b32 v{st[1]+2}, s{self.sNon}
            v_mov_b32 v{st[1]+3}, s{self.sNon+1}
            s_lshl_b32 s{ones}, s{self.sRow}, 4
            s_add_u32 s{ones}, s{ones}, {WS_ST}
            v_lshlrev_b32 v{ta}, 28, v{self.vLane}
            """)
        def st_store(r):
            def f(gg):
                t = gg.I(f"buffer_store_dwordx4 v[{st[r]}:{st[r]+3}], v{ta}, s[{self.rWS}:{self.rWS+3}], s{ones} offen offset:{16*r} sc1")
                self.note_foreign(gg)
            return f
        pst.append(st_store(0)); pst.append(st_store(1))
        n = [v.alloc(8), v.alloc(8)]; dp = [v.alloc(), v.alloc()]
        for k in range(4):
            sq = []
            for r in range(2):
                lo = n[r] + 2 * k; hi = lo + 1
                sq.append(f"""
                v_lshlrev_b32 v{lo}, 16, v{X[r]+k}
                v_and_b32 v{hi}, 0xffff0000, v{X[r]+k}
                v_sub_f32 v{lo}, v{lo}, v{mf[r]}
                v_sub_f32 v{hi}, v{hi}, v{mf[r]}
                v_cvt_pk_bf16_f32 v{dp[r]}, v{lo}, v{hi}
                v_lshlrev_b32 v{lo}, 16, v{dp[r]}
                v_and_b32 v{hi}, 0xffff0000, v{dp[r]}
                v_mul_f32 v{lo}, v{lo}, v{st[r]+1}
                v_mul_f32 v{hi}, v{hi}, v{st[r]+1}
                """.strip().split('\n'))
            for la, lb_ in zip(*sq):
                add(p1b, la); add(p1b, lb_)
        wa = v.alloc()
        add(p1b, f"""
            s_lshl_b32 s{sm[0]}, s{self.sV}, 2
            s_add_u32 s{sm[0]}, s{sm[0]}, {LNX}
            v_add_u32 v{wa}, s{sm[0]}, v{self.vL16}
            """)
        for e in range(8):
            add(p1b, f"v_cvt_pk_bf16_f32 v{n[0]+e}, v{n[0]+e}, v{n[1]+e}")
            add(p1b, f"ds_write_b32 v{wa}, v{n[0]+e} offset:{e * 65 * 16}")
        ra = v.alloc(); ga = v.alloc(); u0 = v.alloc(4, 4); u1 = v.alloc(4, 4)
        add(p1b, f"""
            v_and_b32 v{ra}, 7, v0
            v_mul_u32_u24 v{ra}, 65, v{ra}
            v_lshrrev_b32 v{ga}, 3, v0
            v_add_u32 v{ra}, v{ra}, v{ga}
            v_lshlrev_b32 v{ra}, 4, v{ra}
            v_add_u32 v{ra}, {LNX}, v{ra}
            v_lshlrev_b32 v{ga}, 4, v0
            s_lshl_b32 s{sm[1]}, s{self.sLb}, 13
            """)
        tk = {}
        def rd(gg):
            gg.I(f"ds_read_b128 v[{u0}:{u0+3}], v{ra}")
            tk['u'] = gg.I(f"ds_read_b128 v[{u1}:{u1+3}], v{ra} offset:{32 * 16}")
        p2.append(rd)
        add(p2, f"v_add_u32 v{ra}, 4096, v{ga}")
        p3 = []
        def sto(gg):
            gg.wait_lg(tk['u'])
            gg.I(f"buffer_store_dwordx4 v[{u0}:{u0+3}], v{ga}, s[{self.rWS}:{self.rWS+3}], s{sm[1]} offen sc1")
            self.note_foreign(gg)
            t = gg.I(f"buffer_store_dwordx4 v[{u1}:{u1+3}], v{ra}, s[{self.rWS}:{self.rWS+3}], s{sm[1]} offen sc1")
            self.note_foreign(gg)
            if gg is self.g: self.tk_ln = t
        p3.append(sto)
        def free():
            for r_, n_ in ((xa, 4), (xb, 4), (st[0], 4), (st[1], 4), (n[0], 8), (n[1], 8), (u0, 4), (u1, 4)): v.free(r_, n_)
            for r_ in s1 + s2 + mf + tm + tn + dp + [wa, ta, ra, ga]: v.free(r_)
            for r_ in [ones] + sm: s.free(r_)
        return p1a, pst, p1b, p2, p3, free

    def note_foreign(self, gg):
        if gg is self.g:
            for w in self.windows:
                if w['active']: w['foreign'] += 1

    def code_prefetch(self):
        g = self.g; v = self.v; T = self.sT; P = self.sP2
        lab = g.label("L_pf"); here = g.label("L_here")
        d = v.alloc(4, 4); a = v.alloc()
        g.I(f"s_and_b32 s{T[0]}, s{self.sQ}, 7")
        g.I(f"s_cmp_lg_u32 s{T[0]}, 0")
        g.I(f"s_cbranch_scc1 {lab}")
        g.raw(f"s_getpc_b64 s[{P}:{P+1}]")
        g.raw(f"{here}:")
        g.raw(f"v_lshlrev_b32 v{a}, 4, v0")
        g.raw(f"s_mov_b32 s{T[0]}, (L_codeend - {here} + 4095) / 4096")
        lp = g.label("L_pfl")
        g.raw(f"{lp}:")
        g.raw(f"global_load_dwordx4 v[{d}:{d+3}], v{a}, s[{P}:{P+1}]")
        g.raw(f"v_add_u32 v{a}, 4096, v{a}")
        g.raw(f"s_sub_u32 s{T[0]}, s{T[0]}, 1")
        g.raw(f"s_cmp_lg_u32 s{T[0]}, 0")
        g.raw(f"s_cbranch_scc1 {lp}")
        g.L(lab)
        self.pf_regs = (d, a)

    def kg_params_issue(self):
        I = self.I; M = self.M; v = self.v; T = self.sT
        po = v.alloc(); pd = v.alloc()
        B = self.sB
        M(f"""
        s_lshl_b32 s{B[0]}, s{self.sD}, 8
        s_lshl_b32 s{B[1]}, s{self.sHh}, 7
        s_add_u32 s{B[0]}, s{B[0]}, s{B[1]}
        v_lshlrev_b32 v{po}, 1, v{self.vLane}
        v_add_u32 v{po}, s{B[0]}, v{po}
        s_lshl_b32 s{B[0]}, s{self.sD}, 1
        v_mov_b32 v{pd}, s{B[0]}
        """)
        self.kp = [v.alloc() for _ in range(8)]
        for r, p in zip(self.kp[:6], (self.pAre, self.pAim, self.pBre, self.pBim, self.pCre, self.pCim)):
            I(f"global_load_ushort v{r}, v{po}, s[{p}:{p+1}]")
        I(f"global_load_ushort v{self.kp[6]}, v{pd}, s[{self.pLdt}:{self.pLdt+1}]")
        self.tk_kp = I(f"global_load_ushort v{self.kp[7]}, v{pd}, s[{self.pDsk}:{self.pDsk+1}]")
        v.free(po); v.free(pd)

    def gemm1(self):
        LNX_C = self.opt.get('lnx_c', 4); LNF_C = self.opt.get('lnf_c', 6)
        g = self.g; I = self.I; M = self.M; v = self.v; T = self.sT; s = self.s
        L = self.vLane; sV = self.sV; sWf = self.sWf; sWl = self.sWl
        vXa, vWa, sel = self.vXa, self.vWa, self.sel
        A = [[v.alloc(4, 4) for _ in range(2)] for _ in range(2)]
        B = [[v.alloc(4, 4) for _ in range(2)] for _ in range(2)]
        acc = [[v.alloc(16, 4) for _ in range(2)] for _ in range(2)]
        cs = v.alloc(4, 4)

        def read_list(c, st, buf):
            half = (c % 4) // 2; so = (c & 1) * 32768
            def tr(ftl, hf):
                a = A[buf][ftl] + 2 * hf
                return f"ds_read_b64_tr_b16 v[{a}:{a+1}], v{vWa[half][ftl]} offset:{so + (16*st + 4*hf) * 256}"
            def xb(lt):
                b = B[buf][lt]
                return f"ds_read_b128 v[{b}:{b+3}], v{vXa[half][st]} offset:{so + lt * 4096}"
            return [[tr(0, 0), tr(0, 1)], [xb(0), xb(1)], [tr(1, 0), tr(1, 1)], []]
        def mf(gg, buf, ftl, lt, first):
            d = acc[ftl][lt]
            c_ = "0" if first else f"v[{d}:{d+15}]"
            gg.I(f"v_mfma_f32_32x32x16_bf16 v[{d}:{d+15}], v[{A[buf][ftl]}:{A[buf][ftl]+3}], v[{B[buf][lt]}:{B[buf][lt]+3}], {c_}")

        p1a, pst, p1b, p2, p3, ln_free = self.ln_stream()
        vq = deque(p1a)
        dq = deque()
        def queue_dma(items, setter):
            for k, f in enumerate(items):
                def e(f=f, k=k):
                    t = f(g)
                    if k == len(items) - 1: setter(t)
                dq.append(e)
        queue_dma(self.ring_items(3), lambda t: self.tk_chunk.__setitem__(3, t))
        self.wvm(self.tk_chunk[0])
        g.barrier()
        self.stamp("chunk0")
        tks = []
        for grp in read_list(0, 0, 0):
            for t in grp: tks.append(g.I(t))
        cur = dict(B0=tks[2], B1=tks[3], A1=tks[5])
        buf = 0
        NB = self.opt.get('bg_per_gap', 3)
        for c in range(8):
            for st in range(4):
                first = (c == 0 and st == 0)
                if (c, st) == (1, 0): self.nonce_issue()
                if (c, st) == (2, 1):
                    assert not vq, len(vq)
                    self.nonce_check()
                    vq.extend(pst); vq.extend(p1b)
                if (c, st) == (5, 2): dq.append(self.kg_params_issue)
                if (c, st) == (6, 2):
                    self.stt = [v.alloc(4, 4), v.alloc(4, 4)]
                    self.vSa = v.alloc()
                    M(f"""
                    v_and_b32 v{self.vSa}, 31, v{L}
                    v_lshlrev_b32 v{self.vSa}, 4, v{self.vSa}
                    s_lshl_b32 s{T[0]}, s{self.sI}, 11
                    s_lshl_b32 s{T[1]}, s{sWl}, 10
                    s_add_u32 s{T[0]}, s{T[0]}, s{T[1]}
                    s_add_u32 s{T[0]}, s{T[0]}, {WS_ST}
                    v_add_u32 v{self.vSa}, s{T[0]}, v{self.vSa}
                    """)
                    I(f"buffer_load_dwordx4 v[{self.stt[0]}:{self.stt[0]+3}], v{self.vSa}, s[{self.rWS}:{self.rWS+3}], 0 offen sc1")
                    self.tk_st = I(f"buffer_load_dwordx4 v[{self.stt[1]}:{self.stt[1]+3}], v{self.vSa}, s[{self.rWS}:{self.rWS+3}], 0 offen offset:512 sc1")
                if st == 3:
                    g.wait_lg(cur['A1'])
                    if c < 7:
                        self.stamp(f"c{c}s3")
                        if c == LNX_C:
                            assert not vq, len(vq)
                            g.wait_lg_all()
                        while (c + 1) not in self.tk_chunk: dq.popleft()()
                        self.wvm(self.tk_chunk[c + 1])
                        if c == LNF_C: self.wvm(self.tk_ln)
                        self.stamp(f"c{c}w")
                        g.barrier()
                        if c == LNX_C: vq.extend(p2); vq.extend(p3)
                        if c == LNF_C: self.set_flag(WS_FLN, self.sLb)
                        if c < 4:
                            queue_dma(self.ring_items(c + 4), lambda t, c=c: self.tk_chunk.__setitem__(c + 4, t))
                        else:
                            queue_dma(self.w2_items(c - 4, (c % 4) * 32768), lambda t, c=c: self.tk_w2.__setitem__(c - 4, t))
                nxt = (c, st + 1) if st < 3 else ((c + 1, 0) if c < 7 else None)
                rl = read_list(nxt[0], nxt[1], buf ^ 1) if nxt else [[], [], [], []]
                order = [(0, 0), (0, 1), (1, 0), (1, 1)]
                need = [cur['B0'], cur['B1'], cur['A1'], None]
                tk = []
                ndma = 3 if len(dq) > 8 else 2
                for k, (ftl, lt) in enumerate(order):
                    g.wait_lg(need[k])
                    mf(g, buf, ftl, lt, first)
                    for t in rl[k]: tk.append(g.I(t))
                    isd = (k in (0, 2)) or (k == 3 and ndma == 3)
                    if isd and dq: dq.popleft()()
                    for _ in range(NB + (1 if k == 3 else 0) - (1 if isd else 0)):
                        if vq: vq.popleft()(g)
                c_ = "0" if first else f"v[{cs}:{cs+3}]"
                g.I(f"v_mfma_f32_16x16x32_bf16 v[{cs}:{cs+3}], v[{sel}:{sel+3}], v[{A[buf][0]}:{A[buf][0]+3}], {c_}")
                if tk: cur = dict(B0=tk[2], B1=tk[3], A1=tk[5])
                buf ^= 1
        while dq: dq.popleft()()
        while vq: vq.popleft()(g)
        ln_free()
        self.stamp("g1_loop")
        stt = self.stt
        N = self.sNon; P = self.sP
        lp = g.label("L_sp"); dn = g.label("L_sd")
        def stcmp():
            g.I(f"v_cmp_eq_u64 vcc, s[{N}:{N+1}], v[{stt[0]+2}:{stt[0]+3}]")
            g.I(f"v_cmp_eq_u64 s[{P}:{P+1}], s[{N}:{N+1}], v[{stt[1]+2}:{stt[1]+3}]")
            g.I(f"s_and_b64 vcc, vcc, s[{P}:{P+1}]")
            g.I("s_cmp_eq_u64 vcc, exec")
        self.wvm(self.tk_st)
        stcmp()
        g.I(f"s_cbranch_scc1 {dn}")
        g.I(f"s_mov_b32 s{T[1]}, 0")
        g.L(lp)
        g.raw(f"buffer_load_dwordx4 v[{stt[0]}:{stt[0]+3}], v{self.vSa}, s[{self.rWS}:{self.rWS+3}], 0 offen sc1")
        g.raw(f"buffer_load_dwordx4 v[{stt[1]}:{stt[1]+3}], v{self.vSa}, s[{self.rWS}:{self.rWS+3}], 0 offen offset:512 sc1")
        g.I("s_waitcnt vmcnt(0)")
        stcmp()
        g.M(f"""
        s_cbranch_scc1 {dn}
        s_add_u32 s{T[1]}, s{T[1]}, 1
        s_cmp_gt_u32 s{T[1]}, {SPIN}
        s_cbranch_scc1 {dn}
        s_sleep 1
        s_branch {lp}
        """)
        g.L(dn)
        v.free(self.vSa)
        CS = self.CS
        hi = v.alloc(); lo = v.alloc(); ad = v.alloc()
        M(f"""
        s_lshl_b32 s{T[0]}, s{sWf}, 1
        s_add_u32 s{T[0]}, s{T[0]}, s{sWl}
        s_lshl_b32 s{T[0]}, s{T[0]}, 7
        s_add_u32 s{T[0]}, s{T[0]}, {CS}
        v_lshlrev_b32 v{ad}, 2, v{L}
        v_add_u32 v{ad}, s{T[0]}, v{ad}
        s_mov_b64 s[{self.sEx}:{self.sEx+1}], exec
        s_mov_b64 exec, 0xffff
        """)
        for k in range(2):
            M(f"""
            v_cvt_pk_bf16_f32 v{hi}, v{cs+k}, v{cs+k}
            v_and_b32 v{hi}, 0xffff0000, v{hi}
            v_sub_f32 v{lo}, v{cs+k}, v{hi}
            v_cvt_pk_bf16_f32 v{lo}, v{hi}, v{lo}
            ds_write_b32 v{ad}, v{lo} offset:{64*k}
            """)
        I(f"s_mov_b64 exec, s[{self.sEx}:{self.sEx+1}]")
        v.free(hi); v.free(lo); v.free(ad)
        ca = v.alloc()
        M(f"""
        v_and_b32 v{ca}, 31, v{L}
        v_lshlrev_b32 v{ca}, 2, v{ca}
        s_lshl_b32 s{T[0]}, s{sWf}, 8
        s_lshl_b32 s{T[1]}, s{sWl}, 7
        s_add_u32 s{T[0]}, s{T[0]}, s{T[1]}
        s_add_u32 s{T[0]}, s{T[0]}, {CS}
        v_add_u32 v{ca}, s{T[0]}, v{ca}
        """)
        for k in range(1, 4):
            for r in (A[0][0], A[0][1], B[0][0], B[0][1]): I(f"v_mov_b32 v{r+k}, 0")
        g.wait_lg_all()
        g.barrier()
        I(f"ds_read_b32 v{A[0][0]}, v{ca}")
        I(f"v_xor_b32 v{ca}, 128, v{ca}")
        tk = I(f"ds_read_b32 v{A[0][1]}, v{ca}")
        rH = self.rWS
        sHb = s.alloc(); sHb1 = s.alloc()
        M(f"""
        s_lshl_b32 s{T[0]}, s{self.sI}, 2
        s_lshl_b32 s{T[1]}, s{sWl}, 1
        s_add_u32 s{T[0]}, s{T[0]}, s{T[1]}
        s_mul_i32 s{T[0]}, s{T[0]}, 112
        s_lshl_b32 s{T[1]}, s{self.sJ}, 3
        s_add_u32 s{T[0]}, s{T[0]}, s{T[1]}
        s_lshl_b32 s{T[1]}, s{sWf}, 2
        s_add_u32 s{T[0]}, s{T[0]}, s{T[1]}
        s_lshl_b32 s{T[0]}, s{T[0]}, 10
        s_add_u32 s{sHb}, s{T[0]}, {WS_H}
        s_cmp_eq_u32 s{self.sSp}, 0
        s_cselect_b32 s{sHb}, s{sHb}, 0x40000000
        s_lshl_b32 s{T[1]}, s{sWl}, 11
        s_xor_b32 s{T[2]}, s{T[1]}, 2048
        s_add_u32 s{sHb1}, s{sHb}, s{T[2]}
        s_add_u32 s{sHb}, s{sHb}, s{T[1]}
        s_mov_b64 vcc, 0xffffffff
        """)
        g.wait_lg(tk)
        g.barrier()
        for ftl in range(2): I(f"v_cndmask_b32 v{A[0][ftl]}, 0, v{A[0][ftl]}, vcc")
        for lt in range(2): I(f"v_cndmask_b32 v{B[0][lt]}, 0, v{stt[lt]}, vcc")
        for lt in range(2):
            for ftl in range(2): mf(g, 0, ftl, lt, False)
        v.free(ca)
        self.stamp("g1_aug")
        self.w2_bg_issue(3, 98304)
        self.w2_bg_read(0)
        self.w2_bg_issue(4, self.TOP)
        self.w2_bg_read(1); self.w2_bg_read(2)
        rsl = [v.alloc(2, 2), v.alloc(2, 2)]
        for lt in range(2):
            I(f"v_mov_b32 v{rsl[lt]}, v{stt[lt]+1}")
            I(f"v_mul_f32 v{rsl[lt]+1}, {hx(-LOG2E)}, v{stt[lt]+1}")
        e = v.alloc(4, 2); z = v.alloc(4, 2); o = [v.alloc(4, 4), v.alloc(4, 4)]
        nst = 0
        for lt in range(2):
            for ftl in range(2):
                if (lt, ftl) == (1, 0):
                    fa_ = v.alloc()
                    M(f"""
                    v_lshlrev_b32 v{fa_}, 3, v{L}
                    v_add_u32 v{fa_}, {WS_FLN}, v{fa_}
                    """)
                    self.h_ln = self.poll_issue(fa_, n=4, stride=512)
                d = acc[ftl][lt]; R = rsl[lt]
                for pp in range(2):
                    ob = o[nst & 1]
                    for qq in range(2):
                        q = 2 * pp + qq; x = d + 4 * q
                        M(f"""
                        v_pk_mul_f32 v[{e}:{e+1}], v[{x}:{x+1}], v[{R}:{R+1}] op_sel:[0,1] op_sel_hi:[1,1]
                        v_pk_mul_f32 v[{e+2}:{e+3}], v[{x+2}:{x+3}], v[{R}:{R+1}] op_sel:[0,1] op_sel_hi:[1,1]
                        v_exp_f32 v{e}, v{e}
                        v_exp_f32 v{e+1}, v{e+1}
                        """)
                        self.pump()
                        M(f"""
                        v_exp_f32 v{e+2}, v{e+2}
                        v_exp_f32 v{e+3}, v{e+3}
                        v_pk_mul_f32 v[{z}:{z+1}], v[{x}:{x+1}], v[{R}:{R+1}] op_sel_hi:[1,0]
                        v_pk_mul_f32 v[{z+2}:{z+3}], v[{x+2}:{x+3}], v[{R}:{R+1}] op_sel_hi:[1,0]
                        v_pk_add_f32 v[{e}:{e+1}], v[{e}:{e+1}], 1.0 op_sel_hi:[1,0]
                        v_pk_add_f32 v[{e+2}:{e+3}], v[{e+2}:{e+3}], 1.0 op_sel_hi:[1,0]
                        v_rcp_f32 v{e}, v{e}
                        v_rcp_f32 v{e+1}, v{e+1}
                        """)
                        self.pump()
                        M(f"""
                        v_rcp_f32 v{e+2}, v{e+2}
                        v_rcp_f32 v{e+3}, v{e+3}
                        v_pk_mul_f32 v[{z}:{z+1}], v[{z}:{z+1}], v[{e}:{e+1}]
                        v_pk_mul_f32 v[{z+2}:{z+3}], v[{z+2}:{z+3}], v[{e+2}:{e+3}]
                        v_cvt_pk_bf16_f32 v{ob+2*qq}, v{z}, v{z+1}
                        v_cvt_pk_bf16_f32 v{ob+2*qq+1}, v{z+2}, v{z+3}
                        """)
                    I(f"v_permlane32_swap_b32 v{ob}, v{ob+2}")
                    I(f"v_permlane32_swap_b32 v{ob+1}, v{ob+3}")
                    I(f"s_add_u32 s{T[0]}, s{(sHb, sHb1)[ftl]}, {(lt * 112 + pp) * 1024}")
                    self.tk_h = I(f"buffer_store_dwordx4 v[{ob}:{ob+3}], v{self.vL16}, s[{rH}:{rH+3}], s{T[0]} offen sc1")
                    self.pump()
                    nst += 1
        self.drain()
        s.free(sHb); s.free(sHb1)
        for row in vXa + vWa:
            for r in row: v.free(r)
        v.free(sel, 4); v.free(cs, 4)
        for bb in A + B:
            for r in bb: v.free(r, 4)
        for row in acc:
            for r in row: v.free(r, 16)
        for r in stt: v.free(r, 4)
        for r in rsl: v.free(r, 2)
        v.free(e, 4); v.free(z, 4); v.free(o[0], 4); v.free(o[1], 4)
        if hasattr(self, 'pf_regs'): v.free(self.pf_regs[0], 4); v.free(self.pf_regs[1])
        self.stamp("g1_epi")
        if self.stop == 'g1':
            g.wait_all(); g.barrier()
            self.set_flag(WS_FH, self.sLb)
            g.wait_all()

    def cmul(self, d, x, z, t):
        self.I(f"v_pk_mul_f32 v[{t}:{t+1}], v[{x}:{x+1}], v[{z}:{z+1}] op_sel_hi:[1,0]")
        self.I(f"v_pk_fma_f32 v[{d}:{d+1}], v[{x}:{x+1}], v[{z}:{z+1}], v[{t}:{t+1}] op_sel:[1,1,0] op_sel_hi:[0,1,1] neg_lo:[1,0,0]")

    def kgen(self):
        g = self.g; I = self.I; M = self.M; v = self.v; T = self.sT; s = self.s
        L = self.vLane; kp = self.kp
        g.wait_lg_all()
        g.barrier()
        self.poll_check(self.h_ln)
        self.uu = [v.alloc(4, 4), v.alloc(4, 4)]
        ga = v.alloc()
        M(f"""
        v_lshlrev_b32 v{ga}, 13, v0
        s_lshl_b32 s{T[0]}, s{self.sD0}, 4
        """)
        I(f"buffer_load_dwordx4 v[{self.uu[0]}:{self.uu[0]+3}], v{ga}, s[{self.rWS}:{self.rWS+3}], s{T[0]} offen sc1")
        self.tk_u = I(f"buffer_load_dwordx4 v[{self.uu[1]}:{self.uu[1]+3}], v{ga}, s[{self.rWS}:{self.rWS+3}], s{T[0]} offen offset:16 sc1")
        v.free(ga)
        self.w2_bg_read(3)
        self.w2_bg_issue(5, 98304, after=3)
        self.w2_bg_read(4)
        self.w2_bg_issue(6, self.TOP, after=4)
        self.wvm(self.tk_kp)
        P = lambda: v.alloc(2, 2)
        dt = v.alloc(); arl = v.alloc(); air = v.alloc(); t0 = v.alloc(); t1 = v.alloc(); t2 = v.alloc()
        W = P(); dB = P(); tt = P(); tt2 = P()
        for r in kp: I(f"v_lshlrev_b32 v{r}, 16, v{r}")
        M(f"""
        v_mul_f32 v{dt}, {hx(LOG2E)}, v{kp[6]}
        v_exp_f32 v{dt}, v{dt}
        v_cvt_pk_bf16_f32 v{dt}, v{dt}, v{dt}
        v_and_b32 v{dt}, 0xffff0000, v{dt}
        v_mul_f32 v{arl}, v{dt}, v{kp[0]}
        v_mul_f32 v{air}, v{dt}, v{kp[1]}
        v_mul_f32 v{arl}, {hx(LOG2E)}, v{arl}
        v_mul_f32 v{air}, {hx(1/(2*math.pi))}, v{air}
        v_mul_f32 v{dB}, v{dt}, v{kp[2]}
        v_mul_f32 v{dB+1}, v{dt}, v{kp[3]}
        v_mov_b32 v{tt2}, v{kp[4]}
        v_mov_b32 v{tt2+1}, v{kp[5]}
        """)
        self.cmul(W, tt2, dB, tt)
        self.vDsk = kp[7]
        def zdirect(z, mult):
            m = "1.0" if mult == 1 else hx(float(mult))
            M(f"""
            v_mul_f32 v{t0}, {m}, v{arl}
            v_mul_f32 v{t1}, {m}, v{air}
            v_exp_f32 v{t0}, v{t0}
            v_fract_f32 v{t1}, v{t1}
            v_cos_f32 v{t2}, v{t1}
            v_sin_f32 v{t1}, v{t1}
            v_mul_f32 v{z}, v{t0}, v{t2}
            v_mul_f32 v{z+1}, v{t0}, v{t1}
            """)
        z1 = P(); z2 = P(); z4 = P(); z8 = P(); z256 = P()
        zdirect(z8, 8); zdirect(z1, 1); zdirect(z256, 256)
        self.cmul(z2, z1, z1, tt); self.cmul(z4, z2, z2, tt)
        wa = [v.alloc() for _ in range(16)]
        M(f"""
        v_lshlrev_b32 v{t0}, 2, v{L}
        s_mul_i32 s{T[0]}, s{self.sCh}, {self.XYCH}
        s_lshl_b32 s{T[1]}, s{self.sHh}, 8
        s_add_u32 s{T[0]}, s{T[0]}, s{T[1]}
        s_add_u32 s{T[0]}, s{T[0]}, {self.XY}
        v_add_u32 v{wa[0]}, s{T[0]}, v{t0}
        """)
        for k in range(1, 16): I(f"v_xor_b32 v{wa[k]}, {k << 4}, v{wa[0]}")
        pk = [v.alloc(), v.alloc()]; cnt = [0]
        def put(val, row, isY):
            r = pk[cnt[0] & 1]; cnt[0] += 1
            if isY: I(f"v_cvt_pk_bf16_f32 v{r}, v{val}, -v{val+1}")
            else: I(f"v_cvt_pk_bf16_f32 v{r}, v{val}, v{val+1}")
            I(f"ds_write_b32 v{wa[row & 15]}, v{r} offset:{(self.YOFF if isY else self.XOFF) + row * 512}")
        ya = P(); yb = P(); xa_ = P(); xb_ = P(); xc = P(); tx = P()
        I(f"v_mov_b32 v{ya}, 1.0"); I(f"v_mov_b32 v{ya+1}, 0")
        put(ya, 0, True); put(z8, 1, True)
        ycur = [z8]
        def ystep(j):
            dst = ya if (j & 1) == 0 else yb
            self.cmul(dst, ycur[0], z8, tt); ycur[0] = dst
            put(dst, j, True)
        xw = [lambda: put(W, 0, False)]
        def mk_x(row, src, z, dst):
            def f():
                self.cmul(dst, src, z, tx); put(dst, row, False)
            return f
        prev = W
        for e in range(1, 8):
            dst = xa_ if e & 1 else xb_
            xw.append(mk_x(e, prev, z1, dst)); prev = dst
        c256 = P(); c2 = P()
        xw.append(mk_x(8, W, z256, c256))
        prev = c256
        for e in range(1, 4):
            dst = xa_ if e & 1 else xb_
            xw.append(mk_x(8 + e, prev, z2, dst)); prev = dst
        prev = c256
        for idx, row in enumerate([12, 13, 14, 15, 20, 21, 22]):
            dst = c2 if (idx & 1) == 0 else c256
            xw.append(mk_x(row, prev, z256, dst)); prev = dst
            if idx < 2: xw.append(mk_x(16 + idx, dst, z4, xc))
        xi = 0
        for j in range(2, 32):
            ystep(j)
            if xi < len(xw): xw[xi](); xi += 1
            self.pump()
        while xi < len(xw): xw[xi](); xi += 1
        self.drain()
        for r in (z1, z2, z4, z8, z256, ya, yb, xa_, xb_, xc, tx, c256, c2, W, dB, tt, tt2): v.free(r, 2)
        for r in wa + pk + [dt, arl, air] + kp[:7]: v.free(r)
        R = [v.alloc() for _ in range(4)]; RX = [v.alloc() for _ in range(4)]
        M(f"""
        v_and_b32 v{t0}, 15, v{L}
        v_lshrrev_b32 v{t1}, 4, v{L}
        v_xor_b32 v{t1}, v{t1}, v{t0}
        v_lshlrev_b32 v{t0}, 9, v{t0}
        s_mul_i32 s{T[0]}, s{self.sCh}, {self.XYCH}
        s_add_u32 s{T[0]}, s{T[0]}, {self.XY}
        v_add_u32 v{t0}, s{T[0]}, v{t0}
        s_lshl_b32 s{T[1]}, s{self.sHh}, 13
        """)
        for k in range(4):
            M(f"""
            v_xor_b32 v{t2}, {4*k}, v{t1}
            v_lshlrev_b32 v{t2}, 4, v{t2}
            v_add_u32 v{R[k]}, v{t0}, v{t2}
            v_add_u32 v{RX[k]}, s{T[1]}, v{R[k]}
            """)
        vb = v.alloc(); vs = v.alloc(); gi = v.alloc()
        M(f"""
        s_cmp_eq_u32 s{self.sHh}, 0
        s_cselect_b32 s{T[2]}, 0, {2*516}
        s_cselect_b32 s{T[3]}, {2*4}, {2*1536}
        s_cselect_b32 s{T[4]}, 2, 512
        v_lshrrev_b32 v{gi}, 4, v{L}
        v_mov_b32 v{vb}, s{T[2]}
        v_mov_b32 v{vs}, s{T[4]}
        v_mov_b32 v{t0}, s{T[3]}
        v_cmp_eq_u32 vcc, 1, v{gi}
        v_cndmask_b32 v{vb}, v{vb}, v{t0}, vcc
        v_mov_b32 v{t0}, {2*256}
        v_mov_b32 v{t1}, 4
        v_cmp_eq_u32 vcc, 2, v{gi}
        v_cndmask_b32 v{vb}, v{vb}, v{t0}, vcc
        v_cndmask_b32 v{vs}, v{vs}, v{t1}, vcc
        v_mov_b32 v{t0}, {2*512}
        v_mov_b32 v{t1}, 512
        v_cmp_eq_u32 vcc, 3, v{gi}
        v_cndmask_b32 v{vb}, v{vb}, v{t0}, vcc
        v_cndmask_b32 v{vs}, v{vs}, v{t1}, vcc
        v_and_b32 v{t0}, 15, v{L}
        v_lshlrev_b32 v{t0}, 4, v{t0}
        s_mul_i32 s{T[0]}, s{self.sCh}, {self.TABCH}
        s_add_u32 s{T[0]}, s{T[0]}, {self.TAB + 2}
        v_add3_u32 v{vb}, v{vb}, v{t0}, s{T[0]}
        """)
        g.wait_lg_all()
        g.barrier()
        self.stamp("kg_gen")
        fa = [v.alloc(4, 4) for _ in range(8)]; fb = [[v.alloc(4, 4) for _ in range(8)] for _ in range(2)]
        kacc = [v.alloc(4, 4), v.alloc(4, 4)]
        tks = []
        def kmf(sd):
            g.wait_lg(tks[sd])
            for ct in range(2):
                c_ = "0" if sd == 0 else f"v[{kacc[ct]}:{kacc[ct]+3}]"
                I(f"v_mfma_f32_16x16x32_bf16 v[{kacc[ct]}:{kacc[ct]+3}], v[{fa[sd]}:{fa[sd]+3}], v[{fb[ct][sd]}:{fb[ct][sd]+3}], {c_}")
        for st in range(8):
            I(f"ds_read_b128 v[{fa[st]}:{fa[st]+3}], v{RX[st & 3]} offset:{self.XOFF + (st >> 2) * 256}")
            I(f"ds_read_b128 v[{fb[0][st]}:{fb[0][st]+3}], v{R[st & 3]} offset:{self.YOFF + (st >> 2) * 256}")
            tks.append(I(f"ds_read_b128 v[{fb[1][st]}:{fb[1][st]+3}], v{R[st & 3]} offset:{self.YOFF + 8192 + (st >> 2) * 256}"))
            if st >= 3: kmf(st - 3); self.pump()
        for sd in range(5, 8): kmf(sd); self.pump()
        for r in fa + fb[0] + fb[1]: v.free(r, 4)
        for r in R + RX: v.free(r)
        g.barrier()
        M(f"""
        s_mov_b64 s[{self.sEx}:{self.sEx+1}], exec
        s_cmp_eq_u32 s{self.sHh}, 0
        s_cselect_b64 exec, -1, 0xffffffff
        """)
        tp = [t0, t1, t2, gi]
        for r in range(4):
            for ct in range(2):
                tr_ = tp[(2 * r + ct) & 3]
                I(f"v_cvt_pk_bf16_f32 v{tr_}, v{kacc[ct]+r}, v{kacc[ct]+r}")
                I(f"ds_write_b16 v{vb}, v{tr_} offset:{ct*256}")
            if r < 3: I(f"v_add_u32 v{vb}, v{vb}, v{vs}")
        M(f"""
        s_mov_b64 exec, 1
        s_mul_i32 s{T[0]}, s{self.sCh}, {self.TABCH}
        s_add_u32 s{T[0]}, s{T[0]}, {self.TAB}
        v_mov_b32 v{t0}, s{T[0]}
        v_mov_b32 v{t1}, 0
        ds_write_b16 v{t0}, v{t1}
        s_mov_b64 exec, s[{self.sEx}:{self.sEx+1}]
        """)
        v.free(kacc[0], 4); v.free(kacc[1], 4); v.free(vb); v.free(vs); v.free(gi)
        wa_ = v.alloc(); z = v.alloc(4, 4)
        M(f"""
        v_lshlrev_b32 v{wa_}, 4, v0
        v_add_u32 v{wa_}, {self.U + 512}, v{wa_}
        """)
        self.wvm(self.tk_u)
        I(f"ds_write_b128 v{wa_}, v[{self.uu[0]}:{self.uu[0]+3}]")
        I(f"ds_write_b128 v{wa_}, v[{self.uu[1]}:{self.uu[1]+3}] offset:{self.UCH}")
        M(f"""
        s_mul_i32 s{T[0]}, s{self.sCh}, {self.UCH}
        s_lshl_b32 s{T[1]}, s{self.sHh}, 8
        s_add_u32 s{T[0]}, s{T[0]}, s{T[1]}
        s_add_u32 s{T[0]}, s{T[0]}, {self.U}
        v_lshlrev_b32 v{wa_}, 2, v{L}
        v_add_u32 v{wa_}, s{T[0]}, v{wa_}
        v_mov_b32 v{z}, 0
        ds_write_b32 v{wa_}, v{z}
        """)
        v.free(wa_); v.free(z, 4); v.free(self.uu[0], 4); v.free(self.uu[1], 4)
        self.drain()
        self.wvm(self.tk_h)
        g.wait_lg_all()
        g.barrier()
        self.set_flag(WS_FH, self.sLb)
        self.stamp("kg_tab")
        wa0 = v.alloc()
        I(f"v_lshlrev_b32 v{wa0}, 4, v0")
        xa = self.xa
        E = [v.alloc(12), v.alloc(12)]; Dd = [v.alloc(8, 2), v.alloc(8, 2)]; O = [v.alloc(8, 2), v.alloc(8, 2)]
        tkc = []
        for ch in range(2):
            for k in range(1, 12): tk = I(f"ds_read_u16 v{E[ch] + k}, v{xa[k]} offset:{ch * self.TABCH}")
            tkc.append(tk)
        d = v.alloc(8, 2); o = v.alloc(8, 2); ta = v.alloc(); tz = v.alloc(); tw = v.alloc(); e4 = v.alloc(4)
        P_ = self.sP
        M(f"""
        v_cmp_le_u32 vcc, 3, v{L}
        v_mov_b32 v{t0}, {self.TABCH}
        v_cndmask_b32 v{tz}, 0, v{t0}, vcc
        v_add_u32 v{tz}, {self.TAB}, v{tz}
        v_mov_b32 v{t0}, {self.KRCH - 48}
        v_cndmask_b32 v{tw}, 0, v{t0}, vcc
        v_lshlrev_b32 v{t0}, 4, v{L}
        v_add_u32 v{tw}, v{tw}, v{t0}
        v_add_u32 v{tw}, 4096, v{tw}
        v_cmp_eq_u32 vcc, 0, v{L}
        v_cmp_eq_u32 s[{P_}:{P_+1}], 3, v{L}
        s_or_b64 vcc, vcc, s[{P_}:{P_+1}]
        """)
        for idx, kk in enumerate((3, 2, 1, 0)):
            I(f"v_add_u32 v{t0}, {2 * (kk + 1)}, v{tz}")
            I(f"v_cndmask_b32 v{ta}, v{tz}, v{t0}, vcc")
            tkt = I(f"ds_read_u16 v{e4+idx}, v{ta}")
        for ch in range(2):
            g.wait_lg(tkc[ch])
            e = E[ch]; dd = Dd[ch]
            I(f"v_lshlrev_b32 v{dd}, 16, v{e+1}")
            for m in range(1, 6): I(f"v_lshl_or_b32 v{dd+m}, v{e+2*m+1}, 16, v{e+2*m}")
            self.kr_write(dd, O[ch], wa0, ch * self.KRCH)
        for k in range(3, 8): I(f"v_mov_b32 v{d+k}, 0")
        g.wait_lg(tkt)
        M(f"""
        v_lshlrev_b32 v{d}, 16, v{e4}
        v_lshl_or_b32 v{d+1}, v{e4+2}, 16, v{e4+1}
        v_mov_b32 v{d+2}, v{e4+3}
        s_mov_b64 s[{self.sEx}:{self.sEx+1}], exec
        s_mov_b64 exec, 0x3f
        """)
        self.kr_write(d, o, tw, 0)
        I(f"s_mov_b64 exec, s[{self.sEx}:{self.sEx+1}]")
        for r, n in ((E[0], 12), (E[1], 12), (Dd[0], 8), (Dd[1], 8), (O[0], 8), (O[1], 8), (d, 8), (o, 8), (e4, 4)): v.free(r, n)
        for r in xa + [ta, tz, tw, wa0, t0, t1, t2]: v.free(r)

    def kr_write(self, d, o, wa, off):
        I = self.I
        I(f"ds_write_b128 v{wa}, v[{d+2}:{d+5}] offset:{off}")
        for m in range(4): I(f"v_alignbit_b32 v{o+m}, v{d+2+m}, v{d+1+m}, 16")
        I(f"ds_write_b128 v{wa}, v[{o}:{o+3}] offset:{off + self.KRP}")
        for m in range(4): I(f"v_alignbit_b32 v{o+4+m}, v{d+1+m}, v{d+m}, 16")
        I(f"ds_write_b128 v{wa}, v[{o+4}:{o+7}] offset:{off + 3 * self.KRP}")
        for m in range(4): I(f"v_mov_b32 v{o+m}, v{d+1+m}")
        I(f"ds_write_b128 v{wa}, v[{o}:{o+3}] offset:{off + 2 * self.KRP}")

    def conv(self):
        g = self.g; I = self.I; M = self.M; v = self.v; T = self.sT; s = self.s; L = self.vLane
        vKA = v.alloc(); vUB = v.alloc(); t0 = v.alloc(); t1 = v.alloc(); t2 = v.alloc()
        M(f"""
        v_and_b32 v{t0}, 3, v{L}
        v_mul_u32_u24 v{vKA}, {self.KRP}, v{t0}
        v_lshrrev_b32 v{t1}, 4, v{L}
        v_lshlrev_b32 v{t1}, 4, v{t1}
        v_sub_u32 v{vKA}, v{vKA}, v{t1}
        v_and_b32 v{t0}, 15, v{L}
        v_lshrrev_b32 v{t2}, 2, v{t0}
        v_lshlrev_b32 v{t2}, 3, v{t2}
        v_sub_u32 v{vKA}, v{vKA}, v{t2}
        s_mul_i32 s{T[0]}, s{self.sCh}, {self.KRCH}
        s_lshl_b32 s{T[1]}, s{self.sHh}, 8
        s_sub_u32 s{T[0]}, s{T[0]}, s{T[1]}
        s_add_u32 s{T[0]}, s{T[0]}, {self.KR + 2 * 2056 - 64 * 63 + 256}
        v_add_u32 v{vKA}, s{T[0]}, v{vKA}
        v_lshlrev_b32 v{vUB}, 5, v{t0}
        v_sub_u32 v{vUB}, v{vUB}, v{t1}
        s_mul_i32 s{T[0]}, s{self.sCh}, {self.UCH}
        s_sub_u32 s{T[0]}, s{T[0]}, s{T[1]}
        s_add_u32 s{T[0]}, s{T[0]}, {self.U + 2 * 264 - 192}
        v_add_u32 v{vUB}, s{T[0]}, v{vUB}
        """)
        g.wait_lg_all()
        g.barrier()
        self.stamp("kg_done")
        FA = [[v.alloc(4, 4) for _ in range(8)] for _ in range(2)]
        FB = [[v.alloc(4, 4) for _ in range(8)] for _ in range(2)]
        acc = [v.alloc(4, 4) for _ in range(8)]
        def rd(u, k, buf):
            a = FA[buf][k]; b = FB[buf][k]
            return [f"ds_read_b64 v[{a}:{a+1}], v{vKA} offset:{64 * (59 - 8 * k - u)}",
                    f"ds_read_b64 v[{a+2}:{a+3}], v{vKA} offset:{64 * (59 - 8 * k - u) + 8}",
                    f"ds_read_b128 v[{b}:{b+3}], v{vUB} offset:{64 * (8 * k + 3 - u)}"]
        self.w2_bg_read(5); self.w2_bg_read(6)
        tk0 = []
        for k in range(8):
            for t in rd(0, k, 0): tk = I(t)
            tk0.append(tk)
        for u in range(4):
            buf = u & 1
            pend = deque()
            if u < 3:
                for k in range(8): pend.extend(rd(u + 1, k, buf ^ 1))
            else:
                for r in FA[0] + FB[0]: v.free(r, 4)
                self.g2_prepare()
            ntk = []
            nm = 0
            for tau in range(8):
                g.wait_lg(tk0[tau])
                for k in range(tau + 1):
                    first = (u == 0 and k == 0)
                    d = acc[tau]
                    c_ = "0" if first else f"v[{d}:{d+3}]"
                    I(f"v_mfma_f32_16x16x32_bf16 v[{d}:{d+3}], v[{FA[buf][k]}:{FA[buf][k]+3}], v[{FB[buf][tau-k]}:{FB[buf][tau-k]+3}], {c_}")
                    nm += 1
                    if pend:
                        t = I(pend.popleft())
                        if len(pend) % 3 == 0: ntk.append(t)
                    elif nm % 2 == 0: self.pump()
            if u == 1: self.g2_poll_issue()
            tk0 = ntk
        for r in FA[1] + FB[1]: v.free(r, 4)
        self.stamp("conv_mfma")
        lab = g.label("L_sw")
        g.I(f"s_cmp_eq_u32 s{self.sHh}, 0")
        g.I(f"s_cbranch_scc1 {lab}")
        for k in range(4):
            for r in range(4): g.I(f"v_swap_b32 v{acc[k]+r}, v{acc[k+4]+r}")
        g.L(lab)
        ea = v.alloc(); eb = v.alloc()
        M(f"""
        s_lshl_b32 s{T[0]}, s{self.sV}, 12
        s_add_u32 s{T[0]}, s{T[0]}, {self.EX}
        v_add_u32 v{ea}, s{T[0]}, v{self.vL16}
        """)
        for k in range(4): I(f"ds_write_b128 v{ea}, v[{acc[4+k]}:{acc[4+k]+3}] offset:{k*1024}")
        M(f"""
        s_xor_b32 s{T[0]}, s{self.sV}, 1
        s_lshl_b32 s{T[0]}, s{T[0]}, 12
        s_add_u32 s{T[0]}, s{T[0]}, {self.EX}
        v_add_u32 v{eb}, s{T[0]}, v{self.vL16}
        """)
        ua = v.alloc(); uv = [v.alloc(2, 2) for _ in range(4)]
        M(f"""
        v_and_b32 v{t0}, 15, v{L}
        v_lshlrev_b32 v{ua}, 5, v{t0}
        v_lshrrev_b32 v{t1}, 4, v{L}
        v_lshlrev_b32 v{t1}, 3, v{t1}
        v_add_u32 v{ua}, v{ua}, v{t1}
        v_mov_b32 v{t2}, v{ua}
        s_mul_i32 s{T[0]}, s{self.sCh}, {self.UCH}
        s_lshl_b32 s{T[1]}, s{self.sHh}, 11
        s_add_u32 s{T[0]}, s{T[0]}, s{T[1]}
        s_add_u32 s{T[0]}, s{T[0]}, {self.U + 512}
        v_add_u32 v{ua}, s{T[0]}, v{ua}
        """)
        for k in range(4): I(f"ds_read_b64 v[{uv[k]}:{uv[k]+1}], v{ua} offset:{k*512}")
        self.pump(4)
        g.wait_lg_all()
        g.barrier()
        pr = [v.alloc(4, 4) for _ in range(4)]
        for k in range(4): tk = I(f"ds_read_b128 v[{pr[k]}:{pr[k]+3}], v{eb} offset:{k*1024}")
        sS = self.s2.alloc()
        M(f"""
        s_lshl_b32 s{sS}, s{self.sD}, 12
        s_lshl_b32 s{T[1]}, s{self.sHh}, 11
        s_add_u32 s{sS}, s{sS}, s{T[1]}
        s_add_u32 s{sS}, s{sS}, {WS_S}
        """)
        self.pump(4)
        g.wait_lg(tk)
        x4 = v.alloc(4); so = [v.alloc(2, 2), v.alloc(2, 2)]
        D = self.vDsk
        for k in range(4):
            y = acc[k]; p = pr[k]; o = so[k & 1]
            M(f"""
            v_add_f32 v{y}, v{y}, v{p}
            v_add_f32 v{y+1}, v{y+1}, v{p+1}
            v_add_f32 v{y+2}, v{y+2}, v{p+2}
            v_add_f32 v{y+3}, v{y+3}, v{p+3}
            v_lshlrev_b32 v{x4}, 16, v{uv[k]}
            v_and_b32 v{x4+1}, 0xffff0000, v{uv[k]}
            v_lshlrev_b32 v{x4+2}, 16, v{uv[k]+1}
            v_and_b32 v{x4+3}, 0xffff0000, v{uv[k]+1}
            v_fmac_f32 v{y}, v{x4}, v{D}
            v_fmac_f32 v{y+1}, v{x4+1}, v{D}
            v_fmac_f32 v{y+2}, v{x4+2}, v{D}
            v_fmac_f32 v{y+3}, v{x4+3}, v{D}
            v_cvt_pk_bf16_f32 v{o}, v{y}, v{y+1}
            v_cvt_pk_bf16_f32 v{o+1}, v{y+2}, v{y+3}
            """)
            self.tk_s = I(f"buffer_store_dwordx2 v[{o}:{o+1}], v{t2}, s[{self.rWS}:{self.rWS+3}], s{sS} offen offset:{k*512} sc1")
            self.pump(2)
        self.drain()
        for r in acc + pr: v.free(r, 4)
        for r in uv + so: v.free(r, 2)
        v.free(x4, 4)
        for r in (vKA, vUB, t0, t1, t2, ea, eb, ua, D): v.free(r)
        self.stamp("conv_done")
        if self.stop == 'cv':
            g.wait_all(); g.barrier()

    def g2_poll_issue(self):
        M = self.M; v = self.v; T = self.sT; L = self.vLane
        fa = v.alloc()
        M(f"""
        v_and_b32 v{fa}, 15, v{L}
        v_lshlrev_b32 v{fa}, 3, v{fa}
        s_lshr_b32 s{T[0]}, s{self.sM}, 1
        s_lshl_b32 s{T[0]}, s{T[0]}, 7
        s_add_u32 s{T[0]}, s{T[0]}, {WS_FH}
        v_add_u32 v{fa}, s{T[0]}, v{fa}
        """)
        self.h_h = self.poll_issue(fa)

    def g2_prepare(self):
        g = self.g; I = self.I; M = self.M; v = self.v; T = self.sT; s2 = self.s2; L = self.vLane; sV = self.sV
        self.drain()
        self.poll_check(self.h_h)
        self.D2 = D = 14
        self.hb = hb = [[v.alloc(4, 4) for _ in range(2)] for _ in range(D)]
        self.sHs = sHs = [s2.alloc(), s2.alloc()]
        self.sHg = s2.alloc(); self.sHc = [s2.alloc(), s2.alloc()]
        M(f"""
        s_lshl_b32 s{T[0]}, s{self.sM}, 1
        s_and_b32 s{T[1]}, s{sV}, 1
        s_add_u32 s{T[2]}, s{T[0]}, s{T[1]}
        s_xor_b32 s{T[1]}, s{T[1]}, 1
        s_add_u32 s{T[3]}, s{T[0]}, s{T[1]}
        s_mul_i32 s{T[2]}, s{T[2]}, 112
        s_mul_i32 s{T[3]}, s{T[3]}, 112
        s_mul_i32 s{T[0]}, s{sV}, 28
        s_add_u32 s{T[2]}, s{T[2]}, s{T[0]}
        s_add_u32 s{T[3]}, s{T[3]}, s{T[0]}
        s_lshl_b32 s{T[2]}, s{T[2]}, 10
        s_lshl_b32 s{T[3]}, s{T[3]}, 10
        s_add_u32 s{sHs[0]}, s{T[2]}, {WS_H}
        s_add_u32 s{sHs[1]}, s{T[3]}, {WS_H}
        """)
        self.tkh = {}
        for st in range(D):
            for ls in range(2):
                self.bg.append(lambda st=st, ls=ls: self.hload(st, ls))
        self.xt = xt = [v.alloc(4, 4), v.alloc(4, 4)]; self.vo = vo = v.alloc(); self.vo2 = vo2 = v.alloc()
        self.sXo = sXo = s2.alloc()
        tmp = v.alloc()
        def xl():
            M(f"""
            v_lshrrev_b32 v{vo}, 3, v{L}
            v_lshlrev_b32 v{vo2}, 12, v{vo}
            v_lshlrev_b32 v{vo}, 10, v{vo}
            v_and_b32 v{tmp}, 7, v{L}
            v_lshlrev_b32 v{tmp}, 4, v{tmp}
            v_add_u32 v{vo}, v{vo}, v{tmp}
            v_add_u32 v{vo2}, v{vo2}, v{tmp}
            s_lshl_b32 s{sXo}, s{self.sM}, 16
            s_lshl_b32 s{self.sB[0]}, s{sV}, 14
            s_add_u32 s{sXo}, s{sXo}, s{self.sB[0]}
            s_lshl_b32 s{self.sB[0]}, s{self.sN}, 7
            s_add_u32 s{sXo}, s{sXo}, s{self.sB[0]}
            s_add_u32 s{self.sB[0]}, s{sXo}, 8192
            """)
            I(f"buffer_load_dwordx4 v[{xt[0]}:{xt[0]+3}], v{vo}, s[{self.rX}:{self.rX+3}], s{sXo} offen")
            self.tk_x = I(f"buffer_load_dwordx4 v[{xt[1]}:{xt[1]+3}], v{vo}, s[{self.rX}:{self.rX+3}], s{self.sB[0]} offen")
            v.free(tmp)
        self.bg.append(xl)

    def hload(self, st, ls):
        r = self.hb[st % self.D2][ls]
        G_, C = self.sHg, self.sHc
        if st % 4 == 0 and ls == 0:
            if st == 0: self.I(f"s_mov_b32 s{G_}, s{self.sRot2}")
            else:
                self.I(f"s_add_u32 s{G_}, s{G_}, 1")
                self.I(f"s_cmp_eq_u32 s{G_}, 7")
                self.I(f"s_cselect_b32 s{G_}, 0, s{G_}")
            self.I(f"s_lshl_b32 s{C[0]}, s{G_}, 12")
            self.I(f"s_add_u32 s{C[1]}, s{C[0]}, s{self.sHs[1]}")
            self.I(f"s_add_u32 s{C[0]}, s{C[0]}, s{self.sHs[0]}")
        self.tkh[(st, ls)] = self.I(f"buffer_load_dwordx4 v[{r}:{r+3}], v{self.vL16}, s[{self.rWS}:{self.rWS+3}], s{C[ls]} offen offset:{(st % 4) * 1024} sc1")

    def gemm2(self):
        g = self.g; I = self.I; M = self.M; v = self.v; T = self.sT; s = self.s; L = self.vLane
        RED = 0; XT = 49152; ST_ = 57344
        sV = self.sV; D = self.D2; hb = self.hb; tkh = self.tkh
        xt, vo, vo2, sXo = self.xt, self.vo, self.vo2, self.sXo
        self.rOut = self.s2.alloc(4, 4)
        self.srd(self.rOut, self.pOut, 2 << 20)
        acc = [v.alloc(16, 4) for _ in range(4)]
        xw = [v.alloc(), v.alloc()]; t0 = v.alloc(); t1 = v.alloc()
        M(f"""
        v_lshrrev_b32 v{t0}, 3, v{L}
        v_lshlrev_b32 v{t0}, 7, v{t0}
        v_lshrrev_b32 v{t1}, 4, v{L}
        v_and_b32 v{xw[1]}, 7, v{L}
        v_xor_b32 v{t1}, v{t1}, v{xw[1]}
        v_lshlrev_b32 v{t1}, 4, v{t1}
        s_lshl_b32 s{T[0]}, s{sV}, 11
        s_add_u32 s{T[0]}, s{T[0]}, {XT}
        v_add3_u32 v{xw[0]}, v{t0}, v{t1}, s{T[0]}
        v_xor_b32 v{xw[1]}, 64, v{xw[0]}
        v_add_u32 v{xw[1]}, 1024, v{xw[1]}
        """)
        g.wait_lg_all()
        self.stamp("g2_start")
        hs = None
        SFLAG = self.opt.get('sflag_step', 6); SPOLL = self.opt.get('spoll_step', 16); SCHK = self.opt.get('schk_step', 21)
        for st in range(28):
            self.wvm(tkh[(st, 1)])
            k = 0
            for ds_ in range(2):
                for ls in range(2):
                    d = acc[2 * ds_ + ls]; a = self.aW2 + st * 8 + ds_ * 4; b = hb[st % D][ls]
                    c_ = "0" if st == 0 else f"v[{d}:{d+15}]"
                    I(f"v_mfma_f32_32x32x16_bf16 v[{d}:{d+15}], a[{a}:{a+3}], v[{b}:{b+3}], {c_}")
                    k += 1
                    if st + D < 28 and k in (2, 4) : pass
                    if st + D < 28 and k == 2: self.hload(st + D, 0)
            if st + D < 28: self.hload(st + D, 1)
            if st == SFLAG:
                self.wvm(self.tk_s)
                g.barrier()
                M(f"""
                s_lshl_b32 s{T[2]}, s{self.sC}, 5
                s_add_u32 s{T[2]}, s{T[2]}, s{self.sQ}
                """)
                self.set_flag(WS_FS, T[2])
                self.wvm(self.tk_x)
                for e in range(2): I(f"ds_write_b128 v{xw[e]}, v[{xt[e]}:{xt[e]+3}]")
            if st == SPOLL:
                fs = v.alloc()
                M(f"""
                v_and_b32 v{fs}, 31, v{L}
                v_lshlrev_b32 v{fs}, 3, v{fs}
                s_lshl_b32 s{T[0]}, s{self.sN}, 8
                s_add_u32 s{T[0]}, s{T[0]}, {WS_FS}
                v_add_u32 v{fs}, s{T[0]}, v{fs}
                """)
                hs = self.poll_issue(fs)
            if st == SCHK:
                self.poll_check(hs)
                M(f"""
                s_lshl_b32 s{T[0]}, s{self.sN}, 18
                s_lshl_b32 s{T[1]}, s{sV}, 16
                s_add_u32 s{T[0]}, s{T[0]}, s{T[1]}
                s_lshl_b32 s{T[1]}, s{self.sM}, 7
                s_add_u32 s{T[0]}, s{T[0]}, s{T[1]}
                s_add_u32 s{T[0]}, s{T[0]}, {WS_S}
                s_add_u32 s{T[1]}, s{T[0]}, 32768
                """)
                I(f"buffer_load_dwordx4 v[{xt[0]}:{xt[0]+3}], v{vo2}, s[{self.rWS}:{self.rWS+3}], s{T[0]} offen sc1")
                tk_st = I(f"buffer_load_dwordx4 v[{xt[1]}:{xt[1]+3}], v{vo2}, s[{self.rWS}:{self.rWS+3}], s{T[1]} offen sc1")
        self.stamp("g2_loop")
        ra = v.alloc(); sw = v.alloc()
        M(f"""
        v_lshrrev_b32 v{t0}, 3, v{L}
        v_lshlrev_b32 v{t0}, 7, v{t0}
        v_lshrrev_b32 v{t1}, 4, v{L}
        v_and_b32 v{t1}, 1, v{t1}
        v_lshlrev_b32 v{t1}, 2, v{t1}
        v_and_b32 v{sw}, 7, v{L}
        v_xor_b32 v{t1}, v{t1}, v{sw}
        v_lshlrev_b32 v{t1}, 4, v{t1}
        s_lshl_b32 s{T[0]}, s{sV}, 11
        s_add_u32 s{T[0]}, s{T[0]}, {ST_}
        v_add3_u32 v{sw}, v{t0}, v{t1}, s{T[0]}
        """)
        for k in range(1, 4):
            M(f"""
            s_xor_b32 s{T[2]}, s{sV}, {k}
            s_mul_i32 s{T[2]}, s{T[2]}, 12288
            s_add_u32 s{T[2]}, s{T[2]}, {RED + (k - 1) * 4096}
            v_add_u32 v{ra}, s{T[2]}, v{self.vL16}
            """)
            for q in range(4): I(f"ds_write_b128 v{ra}, v[{acc[k]+4*q}:{acc[k]+4*q+3}] offset:{q*1024}")
        sa = v.alloc(); xa = v.alloc(); sv = [v.alloc(2, 2) for _ in range(4)]; xv = [v.alloc(2, 2) for _ in range(4)]
        M(f"""
        v_lshrrev_b32 v{t0}, 5, v{L}
        v_lshlrev_b32 v{t0}, 2, v{t0}
        v_lshrrev_b32 v{t1}, 2, v{L}
        v_and_b32 v{t1}, 3, v{t1}
        v_add_u32 v{t0}, v{t0}, v{t1}
        v_lshlrev_b32 v{sa}, 7, v{t0}
        v_lshrrev_b32 v{t1}, 1, v{t1}
        s_and_b32 s{T[0]}, s{sV}, 1
        v_xor_b32 v{t1}, s{T[0]}, v{t1}
        v_lshlrev_b32 v{t1}, 6, v{t1}
        v_add_u32 v{sa}, v{sa}, v{t1}
        v_lshrrev_b32 v{t1}, 4, v{L}
        v_and_b32 v{t1}, 1, v{t1}
        v_lshlrev_b32 v{t1}, 5, v{t1}
        v_add_u32 v{sa}, v{sa}, v{t1}
        v_and_b32 v{t1}, 3, v{L}
        v_lshlrev_b32 v{t1}, 3, v{t1}
        v_add_u32 v{sa}, v{sa}, v{t1}
        s_lshr_b32 s{T[1]}, s{sV}, 1
        s_lshl_b32 s{T[1]}, s{T[1]}, 12
        s_add_u32 s{T[1]}, s{T[1]}, {ST_}
        v_add_u32 v{sa}, s{T[1]}, v{sa}
        v_and_b32 v{t0}, 31, v{L}
        v_lshrrev_b32 v{t1}, 1, v{t0}
        v_and_b32 v{t1}, 7, v{t1}
        s_lshr_b32 s{T[1]}, s{sV}, 1
        s_lshl_b32 s{T[1]}, s{T[1]}, 2
        v_xor_b32 v{t1}, s{T[1]}, v{t1}
        v_lshlrev_b32 v{t1}, 4, v{t1}
        v_lshlrev_b32 v{t0}, 7, v{t0}
        v_add_u32 v{xa}, v{t0}, v{t1}
        v_lshrrev_b32 v{t0}, 5, v{L}
        v_lshlrev_b32 v{t0}, 3, v{t0}
        v_add_u32 v{xa}, v{xa}, v{t0}
        s_and_b32 s{T[0]}, s{sV}, 1
        s_lshl_b32 s{T[0]}, s{T[0]}, 12
        s_add_u32 s{T[0]}, s{T[0]}, {XT}
        v_add_u32 v{xa}, s{T[0]}, v{xa}
        s_mul_i32 s{T[0]}, s{sV}, 12288
        s_add_u32 s{T[0]}, s{T[0]}, {RED}
        v_add_u32 v{ra}, s{T[0]}, v{self.vL16}
        """)
        xq = [xa] + [v.alloc() for _ in range(3)]
        for q in range(1, 4): I(f"v_xor_b32 v{xq[q]}, {q << 4}, v{xa}")
        self.wvm(tk_st)
        I(f"ds_write_b128 v{sw}, v[{xt[0]}:{xt[0]+3}]")
        I(f"ds_write_b128 v{sw}, v[{xt[1]}:{xt[1]+3}] offset:1024")
        g.wait_lg_all()
        g.barrier()
        pr = [acc[1], acc[2], acc[3]]
        tq = []
        for q in range(4):
            for k in range(3): I(f"ds_read_b128 v[{pr[k]+4*q}:{pr[k]+4*q+3}], v{ra} offset:{k*4096 + q*1024}")
            I(f"ds_read_b64_tr_b16 v[{sv[q]}:{sv[q]+1}], v{sa} offset:{q*1024}")
            tq.append(I(f"ds_read_b64 v[{xv[q]}:{xv[q]+1}], v{xq[q]}"))
        o = acc[0]
        e = v.alloc(4, 2); u4 = v.alloc(4, 2); x4 = v.alloc(4, 2); ob = [v.alloc(2, 2), v.alloc(2, 2)]
        cL = self.sP2
        M(f"""
        s_mov_b32 s{cL}, {hx(-LOG2E)}
        s_mov_b32 s{cL+1}, {hx(-LOG2E)}
        """)
        for q in range(4):
            z = o + 4 * q
            g.wait_lg(tq[q])
            for k in range(3):
                I(f"v_pk_add_f32 v[{z}:{z+1}], v[{z}:{z+1}], v[{pr[k]+4*q}:{pr[k]+4*q+1}]")
                I(f"v_pk_add_f32 v[{z+2}:{z+3}], v[{z+2}:{z+3}], v[{pr[k]+4*q+2}:{pr[k]+4*q+3}]")
            M(f"""
            v_pk_mul_f32 v[{e}:{e+1}], v[{z}:{z+1}], s[{cL}:{cL+1}]
            v_pk_mul_f32 v[{e+2}:{e+3}], v[{z+2}:{z+3}], s[{cL}:{cL+1}]
            v_exp_f32 v{e}, v{e}
            v_exp_f32 v{e+1}, v{e+1}
            v_exp_f32 v{e+2}, v{e+2}
            v_exp_f32 v{e+3}, v{e+3}
            v_lshlrev_b32 v{u4}, 16, v{sv[q]}
            v_and_b32 v{u4+1}, 0xffff0000, v{sv[q]}
            v_lshlrev_b32 v{u4+2}, 16, v{sv[q]+1}
            v_and_b32 v{u4+3}, 0xffff0000, v{sv[q]+1}
            v_pk_add_f32 v[{e}:{e+1}], v[{e}:{e+1}], 1.0 op_sel_hi:[1,0]
            v_pk_add_f32 v[{e+2}:{e+3}], v[{e+2}:{e+3}], 1.0 op_sel_hi:[1,0]
            v_rcp_f32 v{e}, v{e}
            v_rcp_f32 v{e+1}, v{e+1}
            v_rcp_f32 v{e+2}, v{e+2}
            v_rcp_f32 v{e+3}, v{e+3}
            v_lshlrev_b32 v{x4}, 16, v{xv[q]}
            v_and_b32 v{x4+1}, 0xffff0000, v{xv[q]}
            v_lshlrev_b32 v{x4+2}, 16, v{xv[q]+1}
            v_and_b32 v{x4+3}, 0xffff0000, v{xv[q]+1}
            v_pk_mul_f32 v[{z}:{z+1}], v[{z}:{z+1}], v[{e}:{e+1}]
            v_pk_mul_f32 v[{z+2}:{z+3}], v[{z+2}:{z+3}], v[{e+2}:{e+3}]
            v_pk_fma_f32 v[{z}:{z+1}], v[{z}:{z+1}], v[{u4}:{u4+1}], v[{x4}:{x4+1}]
            v_pk_fma_f32 v[{z+2}:{z+3}], v[{z+2}:{z+3}], v[{u4+2}:{u4+3}], v[{x4+2}:{x4+3}]
            v_cvt_pk_bf16_f32 v{ob[q&1]}, v{z}, v{z+1}
            v_cvt_pk_bf16_f32 v{ob[q&1]+1}, v{z+2}, v{z+3}
            """)
            I(f"ds_write_b64 v{xq[q]}, v[{ob[q&1]}:{ob[q&1]+1}]")
        g.wait_lg_all()
        g.barrier()
        for e_ in range(2): I(f"ds_read_b128 v[{xt[e_]}:{xt[e_]+3}], v{xw[e_]}")
        I(f"s_add_u32 s{T[0]}, s{sXo}, 8192")
        g.wait_lg_all()
        I(f"buffer_store_dwordx4 v[{xt[0]}:{xt[0]+3}], v{vo}, s[{self.rOut}:{self.rOut+3}], s{sXo} offen")
        I(f"buffer_store_dwordx4 v[{xt[1]}:{xt[1]+3}], v{vo}, s[{self.rOut}:{self.rOut+3}], s{T[0]} offen")

def wrap(body, lds=163840):
    hdr = open("cdna_kernels/" + NAME.replace("_kernel", "") + ".s.ref").read().split("; Override")[0]
    return hdr + f"""; @launch grid=(256,1,1) block=(256,1,1) lds={lds}
.amdgcn_target "amdgcn-amd-amdhsa--gfx950"
.text
.globl {NAME}
.p2align 8
.type {NAME},@function
{NAME}:
{body}
s_endpgm
.section .rodata,"a"
.p2align 6
.amdhsa_kernel {NAME}
  .amdhsa_next_free_vgpr 512
  .amdhsa_next_free_sgpr 102
  .amdhsa_accum_offset 256
  .amdhsa_group_segment_fixed_size 0
  .amdhsa_kernarg_size 120
  .amdhsa_user_sgpr_count 2
  .amdhsa_user_sgpr_kernarg_segment_ptr 1
  .amdhsa_system_sgpr_workgroup_id_x 1
  .amdhsa_float_denorm_mode_32 3
  .amdhsa_float_denorm_mode_16_64 3
.end_amdhsa_kernel
"""

if __name__ == "__main__":
    import json
    stop = sys.argv[1]
    out = sys.argv[2]
    prof = len(sys.argv) > 3 and sys.argv[3] == 'prof'
    opt = json.loads(sys.argv[4]) if len(sys.argv) > 4 else {}
    k = Kern(stop=None if stop == 'all' else stop, prof=prof, opt=opt)
    open(out, "w").write(wrap(k.build()))
    print("written", out, "max v", k.v.maxused, "max s", k.s.maxused, "s2", k.s2.maxused)
    if prof: print("stamps:", ",".join(k.stamps))
```

```python
import re

REG_RE = re.compile(r'^(-|\|)?(abs\()?(v|a|s)(\d+)\)?\|?$')
RNG_RE = re.compile(r'^(-)?(v|a|s)\[(\d+):(\d+)\]$')
TRANS = ('v_exp_f32', 'v_log_f32', 'v_rcp_f32', 'v_rsq_f32', 'v_sqrt_f32', 'v_sin_f32', 'v_cos_f32',
         'v_exp_f16', 'v_rcp_iflag_f32')

def regs_of(tok):
    tok = tok.strip()
    m = REG_RE.match(tok)
    if m: return [(m.group(3), int(m.group(4)))]
    m = RNG_RE.match(tok)
    if m: return [(m.group(2), i) for i in range(int(m.group(3)), int(m.group(4)) + 1)]
    if tok in ('vcc',): return [('vcc', 0)]
    if tok in ('vcc_lo', 'vcc_hi'): return [('vcc', 0)]
    if tok in ('exec', 'exec_lo', 'exec_hi'): return [('exec', 0)]
    if tok == 'm0': return [('m0', 0)]
    return []

class Ins:
    __slots__ = ('text', 'op', 'rd', 'wr', 'kind', 'passes', 'flags', 'ops')
    def __init__(self, text):
        self.text = text
        t = text.split(';')[0].strip()
        parts = t.split(None, 1)
        self.op = op = parts[0]
        rest = parts[1] if len(parts) > 1 else ''
        raw = [x.strip() for x in rest.split(',')] if rest else []
        ops = []; mods = []
        joined = rest
        joined = re.sub(r'\b(op_sel|op_sel_hi|neg_lo|neg_hi|quad_perm):\[[^\]]*\]', '', joined)
        raw = [x.strip() for x in joined.split(',')] if joined.strip() else []
        for i, x in enumerate(raw):
            w = x.split()
            if not w: continue
            ops.append(w[0]); mods += w[1:]
        self.ops = ops
        R = [regs_of(o) for o in ops]
        rd = []; wr = []; kind = 'other'; passes = 0; flags = set()
        dpp = ('_dpp' in op) or any(m.startswith(('row_', 'quad_perm', 'wave_')) for m in mods) or 'quad_perm' in rest
        if op.startswith('v_mfma'):
            kind = 'mfma'
            passes = 8 if '32x32x16' in op else 4 if '16x16x32' in op else None
            assert passes, op
            wr = R[0]; rd = R[1] + R[2] + R[3]
            self.flags = {'srcC': set(R[3]), 'srcAB': set(R[1] + R[2])}
        elif op.startswith('v_'):
            kind = 'valu'
            base = op.replace('_e32', '').replace('_e64', '').replace('_dpp', '').replace('_sdwa', '')
            if base in TRANS: flags.add('trans')
            if dpp: flags.add('dpp')
            if base.startswith('v_cmp'):
                wr = R[0]; rd = sum(R[1:], [])
            elif base in ('v_readlane_b32', 'v_readfirstlane_b32'):
                wr = R[0]; rd = sum(R[1:], []); flags.add('readlane')
            elif base == 'v_writelane_b32':
                wr = R[0]; rd = sum(R, []); flags.add('readlane')
            elif base in ('v_add_co_u32', 'v_sub_co_u32', 'v_subrev_co_u32', 'v_addc_co_u32', 'v_subb_co_u32'):
                wr = R[0] + R[1]; rd = sum(R[2:], [])
            elif base.startswith('v_permlane'):
                wr = R[0] + R[1]; rd = R[0] + R[1]; flags.add('permlane')
            elif base in ('v_fmac_f32', 'v_dot2c_f32_bf16', 'v_fmac_f16'):
                wr = R[0]; rd = sum(R, [])
            else:
                wr = R[0]; rd = sum(R[1:], [])
                if dpp: rd = rd + R[0]
            if base == 'v_cndmask_b32' and len(ops) == 3: rd = rd + [('vcc', 0)]
            rd = rd + [('exec', 0)]
        elif op.startswith('ds_'):
            kind = 'ds'
            if op.startswith(('ds_read', 'ds_bpermute', 'ds_permute', 'ds_swizzle')):
                wr = R[0]; rd = sum(R[1:], [])
            else:
                rd = sum(R, [])
        elif op.startswith(('buffer_', 'global_', 'flat_')):
            kind = 'vmem'
            islds = ('lds' in mods) or ('_lds_' in op)
            if op in ('buffer_wbl2', 'buffer_inv'):
                pass
            elif 'load' in op and not islds:
                wr = R[0]; rd = sum(R[1:], [])
            else:
                rd = sum(R, [])
                if islds: rd = rd + [('m0', 0)]; flags.add('ldsdma')
                if 'store' in op and ('x4' in op or 'x3' in op):
                    flags.add('widestore')
                    self.flags = None
                    data = R[0] if op.startswith('buffer_') else R[1]
                    flags.add(('data', tuple(data)))
            if 'atomic' in op and 'sc0' in mods:
                wr = R[0]
        elif op.startswith('s_'):
            kind = 'salu'
            if op.startswith(('s_cmp', 's_cbranch', 's_branch', 's_waitcnt', 's_barrier', 's_nop', 's_sleep',
                              's_setprio', 's_endpgm', 's_bitcmp')):
                rd = sum(R, [])
                if op.startswith('s_cbranch_vcc'): rd.append(('vcc', 0))
                if op.startswith('s_cbranch_exec'): rd.append(('exec', 0))
            elif 'saveexec' in op:
                wr = R[0] + [('exec', 0)]; rd = sum(R[1:], []) + [('exec', 0)]
            elif op.startswith(('s_load', 's_buffer_load', 's_memtime', 's_memrealtime')):
                kind = 'smem'; wr = R[0]; rd = sum(R[1:], [])
            else:
                wr = R[0] if R else []; rd = sum(R[1:], [])
        self.rd = set(rd); self.wr = set(wr); self.kind = kind; self.passes = passes
        if kind != 'mfma': self.flags = flags

def states(ins):
    if ins.op == 's_nop':
        return int(ins.ops[0], 0) + 1
    return 1

def need_dist(p, c):
    n = 0
    pw = p.wr
    if p.kind == 'valu':
        sg = {r for r in pw if r[0] in ('s', 'vcc')}
        vg = {r for r in pw if r[0] in ('v', 'a')}
        if sg:
            if c.kind == 'valu' and (sg & c.rd):
                n = max(n, 4 if 'readlane' in c.flags and False else 2)
                if 'readlane' in c.flags: n = max(n, 4)
            if c.kind == 'vmem' and (sg & c.rd): n = max(n, 5)
        if vg:
            if c.kind == 'valu':
                if 'readlane' in c.flags and (vg & c.rd): n = max(n, 1)
                if 'dpp' in c.flags and (vg & c.rd): n = max(n, 2)
                if 'permlane' in c.flags and (vg & c.rd): n = max(n, 2)
                if 'trans' in p.flags and 'trans' not in c.flags and (vg & c.rd): n = max(n, 1)
                if 'trans' in p.flags and 'trans' in c.flags and (vg & c.rd): n = max(n, 1)
            if c.kind == 'mfma' and (vg & c.rd): n = max(n, 2)
        if ('exec', 0) in pw:
            if c.kind == 'mfma': n = max(n, 4)
            if c.kind == 'valu' and 'dpp' in c.flags: n = max(n, 5)
    if p.kind == 'salu' and ('m0', 0) in pw and c.kind == 'vmem' and 'ldsdma' in c.flags:
        n = max(n, 1)
    if p.kind == 'vmem' and 'widestore' in p.flags:
        data = [f for f in p.flags if isinstance(f, tuple)][0][1]
        if set(data) & c.wr:
            n = max(n, 2 if c.kind == 'valu' else 1)
    if p.kind == 'mfma':
        D = p.wr; ps = p.passes
        if c.kind == 'mfma':
            cC = c.flags['srcC']; cAB = c.flags['srcAB']
            if D & cC:
                if D == cC and ps == c.passes: pass
                else: n = max(n, {4: 6, 8: 10}[ps])
            if D & cAB: n = max(n, {4: 8, 8: 12}[ps])
            if (D & c.wr) and not (D == c.wr and D == cC): n = max(n, {4: 6, 8: 10}[ps])
        elif c.kind in ('valu', 'vmem', 'ds'):
            if D & (c.rd | c.wr): n = max(n, {4: 8, 8: 12}[ps])
        if c.kind in ('valu', 'ds', 'vmem') and (p.flags['srcC'] & c.wr):
            n = max(n, {4: 3, 8: 7}[ps])
    return n

class G:
    def __init__(self):
        self.items = []
        self.vm = 0; self.vm_done = 0
        self.lg = 0; self.lg_done = 0
        self.nlab = 0
        self.pend = {}
        self.check = True
    def _chk(self, ins):
        if not self.check: return
        for r in (ins.rd | ins.wr):
            if r[0] not in ('v', 'a'): continue
            p = self.pend.get(r)
            if p is None: continue
            done = self.vm_done if p[0] == 'vm' else self.lg_done
            if p[1] > done:
                if ins.kind in ('vmem', 'ds') and r in ins.wr and r not in ins.rd and ((ins.kind == 'vmem') == (p[0] == 'vm')): continue
                raise AssertionError(f"register {r} used by '{ins.text}' while load ticket {p} is outstanding (done {done})")
    def I(self, text):
        text = text.strip()
        ins = Ins(text)
        if ins.kind == 'ds' and self.lg - self.lg_done >= 15:
            self.wait_lg(self.lg - 11)
        if ins.kind == 'vmem':
            assert self.vm - self.vm_done < 62, "too many outstanding vmem ops"

        self._chk(ins)
        self.items.append(ins)
        if ins.kind == 'vmem':
            for r in ins.wr: self.pend[r] = ('vm', self.vm + 1)
        if ins.kind == 'ds':
            for r in ins.wr: self.pend[r] = ('lg', self.lg + 1)
        if ins.kind == 'vmem' and ins.op not in ('buffer_wbl2', 'buffer_inv'):
            self.vm += 1; return self.vm
        if ins.kind == 'vmem':
            self.vm += 1; return self.vm
        if ins.kind == 'ds':
            self.lg += 1; return self.lg
        return None
    def M(self, text):
        r = None
        for ln in text.strip().split('\n'):
            ln = ln.strip()
            if not ln or ln.startswith(';'): continue
            if ln.endswith(':'): self.L(ln[:-1])
            else: r = self.I(ln)
        return r
    def L(self, name): self.items.append(('label', name))
    def variant(self, cond_text, body_alt, body_main):
        lin = self.label("L_va"); lout = self.label("L_vb")
        self.I(cond_text)
        g2 = G(); g2.vm, g2.vm_done, g2.lg, g2.lg_done, g2.nlab = self.vm, self.vm_done, self.lg, self.lg_done, self.nlab + 1000
        body_alt(g2)
        self.items.append(('ool', lin, g2.items, lout))
        body_main(self)
        assert g2.lg == self.lg and g2.lg_done == self.lg_done, (g2.lg, self.lg, g2.lg_done, self.lg_done)
        self.items.append(('softlabel', lout))
    def raw(self, text): self.items.append(('raw', text))
    def C(self, text): self.items.append(('raw', '; ' + text))
    def label(self, base):
        self.nlab += 1; return f"{base}_{self.nlab}"
    def wait_vm(self, t):
        if t is None or t <= self.vm_done: return
        n = self.vm - t
        if n <= 63:
            self.I(f"s_waitcnt vmcnt({n})"); self.vm_done = t
        else:
            self.I("s_waitcnt vmcnt(63)"); self.vm_done = max(self.vm_done, self.vm - 63)
            assert self.vm_done >= t
    def wait_lg(self, t):
        if t is None or t <= self.lg_done: return
        n = self.lg - t
        assert n >= 0
        if n <= 15:
            self.I(f"s_waitcnt lgkmcnt({n})"); self.lg_done = t
        else:
            self.I("s_waitcnt lgkmcnt(15)"); self.lg_done = self.lg - 15
            raise AssertionError("lgkm wait too deep")
    def wait_all(self):
        self.I("s_waitcnt vmcnt(0) lgkmcnt(0)"); self.vm_done = self.vm; self.lg_done = self.lg
    def wait_lg_all(self):
        self.I("s_waitcnt lgkmcnt(0)"); self.lg_done = self.lg
    def wait_vm_all(self):
        self.I("s_waitcnt vmcnt(0)"); self.vm_done = self.vm
    def barrier(self): self.I("s_barrier")
    def text(self):
        out = []
        pending = []
        self._emit(self.items, out, [], pending)
        tail = []
        while pending:
            lin, items, lout, hist = pending.pop(0)
            tail.append(lin + ':')
            self._emit(items, tail, hist, pending)
            tail.append(f"s_branch {lout}")
        if '@@OOL@@' in out:
            i = out.index('@@OOL@@'); out[i:i+1] = tail
        else:
            out += tail
        return '\n'.join(out) + '\n'

    def _emit(self, items, out, hist0, pending):
        hist = list(hist0)
        WIN = 24
        st = {'h': hist}
        def age_all(k):
            st['h'] = [(i, a + k) for (i, a) in st['h'] if a + k < WIN]
        def emit_nop(n):
            while n > 0:
                k = min(n, 16)
                out.append(f"s_nop {k-1}"); age_all(k); n -= k
        def flush_for_cf():
            worst = 0
            for ins, age in st['h']:
                if ins.kind == 'mfma': w = {4: 8, 8: 12}[ins.passes]
                elif ins.kind == 'valu': w = 5
                elif ins.kind == 'vmem' and 'widestore' in ins.flags: w = 2
                elif ins.kind == 'salu' and ('m0', 0) in ins.wr: w = 1
                else: w = 0
                worst = max(worst, w - age)
            emit_nop(worst)
        for it in items:
            if isinstance(it, tuple):
                if it[0] == 'label':
                    flush_for_cf(); out.append(it[1] + ':'); st['h'] = []
                elif it[0] == 'softlabel':
                    out.append(it[1] + ':')
                elif it[0] == 'ool':
                    out.append(f"s_cbranch_scc1 {it[1]}"); age_all(1)
                    pending.append((it[1], it[2], it[3], list(st['h'])))
                else: out.append(it[1])
                continue
            ins = it
            if ins.op.startswith(('s_cbranch', 's_branch')):
                need = 0
                for p, age in st['h']: need = max(need, need_dist(p, ins) - age)
                emit_nop(need)
                flush_for_cf()
                out.append(ins.text); age_all(1); continue
            need = 0
            for p, age in st['h']: need = max(need, need_dist(p, ins) - age)
            emit_nop(need)
            out.append(ins.text)
            age_all(states(ins))
            st['h'].append((ins, 0))

class RA:
    def __init__(self, kind, lo, hi):
        self.kind = kind; self.lo = lo; self.hi = hi; self.used = [False] * hi; self.maxused = lo
    def alloc(self, n=1, align=1):
        a = max(align, 1)
        i = self.lo
        while i + n <= self.hi:
            if i % a == 0 and not any(self.used[i:i + n]):
                for k in range(i, i + n): self.used[k] = True
                self.maxused = max(self.maxused, i + n)
                return i
            i += 1
        raise RuntimeError(f"out of {self.kind} regs (need {n})")
    def free(self, i, n=1):
        for k in range(i, i + n):
            assert self.used[k]; self.used[k] = False

def vr(i, n=1, k='v'):
    return f"{k}{i}" if n == 1 else f"{k}[{i}:{i+n-1}]"
def ar(i, n=1): return vr(i, n, 'a')
def sr(i, n=1): return vr(i, n, 's')
```

```python
import sys, math
from collections import deque
sys.path.insert(0, "gen")
from asmgen import *

NAME = "recurrent_scan__ssm_conv_s4__dense_activation_silu__prompt_kernel"
WS_XN = 0
WS_ST = 2 << 20
WS_FLN = WS_ST + 0x8000
WS_FH = WS_FLN + 0x1000
WS_FS = WS_FH + 0x1000
WS_S = 3 << 20
WS_H = 5 << 20
WS_DBG = 13 << 20
WS_SIZE = 64 << 20
LOG2E = 1.4426950408889634
SPIN = 0x20000

def f2u(x):
    import struct
    return struct.unpack('<I', struct.pack('<f', x))[0]
def hx(x): return f"0x{f2u(x):08x}"

class Kern:
    KR = 0; KRP = 4160; KRCH = 4 * 4160
    XY = 33280; XYCH = 28160; YOFF = 0; XOFF = 16384
    TAB = 33280; TABCH = 5120
    U = 43520; UCH = 4608
    EX = 52736
    TOP = 131072
    CS = 131072
    LNX = 131072

    def __init__(self, stop=None, prof=False, opt=None):
        self.g = G()
        self.prof = prof
        self.stamps = []
        self.stop = stop
        self.opt = opt or {}
        self.v = RA('v', 1, 256)
        self.a = RA('a', 0, 256)
        self.s = RA('s', 34, 102)
        self.s2 = RA('s', 6, 20)
        self.bg = deque()
        self.windows = []

    def I(self, t):
        r = self.g.I(t)
        if self.g.items[-1].kind == 'vmem':
            for w in self.windows:
                if w['active']: w['foreign'] += 1
        return r
    def M(self, text):
        r = None
        for ln in text.strip().split('\n'):
            ln = ln.strip()
            if not ln or ln.startswith(';'): continue
            r = self.I(ln)
        return r
    def wvm(self, t):
        g = self.g
        if t is None or t <= g.vm_done: return
        n = g.vm - t
        for w in self.windows:
            if w['active'] and t < w['first']: n -= 8
            if t == w['last']: n -= w['foreign']
        assert 0 <= n <= 63, n
        g.I(f"s_waitcnt vmcnt({n})")
        g.vm_done = max(g.vm_done, t)
    def win_open(self):
        g = self.g
        for w in self.windows: w['active'] = False
        first = g.vm + 1; g.vm += 8
        self.windows.append(dict(first=first, last=g.vm, foreign=0, active=True))
        return g.vm
    def win_close(self):
        for w in self.windows: w['active'] = False
    def pump(self, n=1):
        for _ in range(n):
            if self.bg: self.bg.popleft()()
    def drain(self):
        while self.bg: self.bg.popleft()()

    def stamp(self, name):
        if not self.prof: return
        g = self.g
        k = len(self.stamps)
        self.stamps.append(name)
        P = self.sP2
        if k == 0:
            g.I(f"s_memrealtime s[{P}:{P+1}]")
            g.I("s_waitcnt lgkmcnt(0)")
            g.I(f"v_writelane_b32 v{self.vStamp}, s{P}, 62")
        g.I(f"s_memtime s[{P}:{P+1}]")
        g.I("s_waitcnt lgkmcnt(0)"); g.lg_done = g.lg
        g.I(f"v_writelane_b32 v{self.vStamp}, s{P}, {k}")
        if name == "end":
            g.I(f"s_memrealtime s[{P}:{P+1}]")
            g.I("s_waitcnt lgkmcnt(0)")
            g.I(f"v_writelane_b32 v{self.vStamp}, s{P}, 63")

    def finish(self):
        g = self.g
        if self.prof:
            g.wait_all()
            self.stamp("end")
            v = self.v
            a = v.alloc()
            g.I(f"s_lshl_b32 s{self.sT[0]}, s2, 10")
            g.I(f"s_lshl_b32 s{self.sT[1]}, s{self.sV}, 8")
            g.I(f"s_add_u32 s{self.sT[0]}, s{self.sT[0]}, s{self.sT[1]}")
            g.I(f"s_add_u32 s{self.sT[0]}, s{self.sT[0]}, {WS_DBG + (2 << 20)}")
            g.I(f"v_lshlrev_b32 v{a}, 2, v{self.vLane}")
            g.I(f"buffer_store_dword v{self.vStamp}, v{a}, s[{self.rWS}:{self.rWS+3}], s{self.sT[0]} offen")
        g.I("s_endpgm")
        g.raw("@@OOL@@")
        g.raw("L_codeend:")
        g.raw("L_end:")
        return g.text()

    def build(self):
        g = self.g; v = self.v; s = self.s
        self.pX, self.pAre, self.pAim, self.pBre, self.pBim, self.pCre, self.pCim, self.pLdt = 4, 6, 8, 10, 12, 14, 16, 18
        self.pDsk, self.pBx, self.pW1, self.pW2 = 20, 22, 24, 26
        self.pOut, self.pDbg, self.pWs = 28, 30, 32
        self.rX = s.alloc(4, 4); self.rW1 = s.alloc(4, 4); self.rW2 = s.alloc(4, 4)
        self.rWS = s.alloc(4, 4)
        self.sC = s.alloc(); self.sQ = s.alloc(); self.sI = s.alloc(); self.sJ = s.alloc(); self.sV = s.alloc()
        self.sLb = s.alloc(); self.sSp = s.alloc()
        self.sNon = s.alloc(2, 2)
        self.sT = [s.alloc() for _ in range(8)]
        self.sB = [s.alloc() for _ in range(2)]
        self.sP = s.alloc(2, 2); self.sP2 = s.alloc(2, 2); self.sEx = s.alloc(2, 2)
        self.vLane = v.alloc()
        if self.prof: self.vStamp = v.alloc()
        self.prologue()
        self.ln_phase()
        self.gemm1()
        if self.stop == 'g1': return self.finish()
        self.kgen()
        self.conv()
        if self.stop == 'cv': return self.finish()
        self.gemm2()
        return self.finish()

    def prologue(self):
        g = self.g; I = self.I; M = self.M; v = self.v; s = self.s; T = self.sT
        sC, sQ, sI, sJ, sV = self.sC, self.sQ, self.sI, self.sJ, self.sV
        L = self.vLane
        vt = v.alloc()
        g.I("s_cmp_ge_u32 s2, 256"); g.raw("s_cbranch_scc1 L_end")
        self.stamp("entry")
        M(f"""
        s_load_dwordx16 s[4:19], s[0:1], 0
        s_load_dwordx8 s[20:27], s[0:1], 64
        s_load_dwordx4 s[28:31], s[0:1], 96
        s_load_dwordx2 s[32:33], s[0:1], 112
        s_and_b32 s{sC}, s2, 7
        s_lshr_b32 s{sQ}, s2, 3
        s_lshr_b32 s{T[0]}, s{sC}, 1
        s_lshl_b32 s{T[0]}, s{T[0]}, 2
        s_and_b32 s{sI}, s{sQ}, 3
        s_add_u32 s{sI}, s{sI}, s{T[0]}
        s_lshr_b32 s{T[1]}, s{sQ}, 2
        s_and_b32 s{T[0]}, s{sC}, 1
        s_mul_i32 s{sJ}, s{T[0]}, 7
        s_add_u32 s{sJ}, s{sJ}, s{T[1]}
        s_lshl_b32 s{T[0]}, s{T[0]}, 3
        s_add_u32 s{T[0]}, s{T[0]}, s{T[1]}
        s_lshl_b32 s{self.sLb}, s{sI}, 4
        s_add_u32 s{self.sLb}, s{self.sLb}, s{T[0]}
        s_cmp_eq_u32 s{T[1]}, 7
        s_cselect_b32 s{self.sSp}, 1, 0
        v_and_b32 v{L}, 63, v0
        v_lshrrev_b32 v{vt}, 6, v0
        v_readfirstlane_b32 s{sV}, v{vt}
        """)
        v.free(vt)
        self.vL16 = v.alloc(); self.vXo4 = [v.alloc() for _ in range(4)]; self.vWo4 = [v.alloc() for _ in range(4)]
        self.vXo = self.vXo4[:2]; self.vWo = self.vWo4[0]
        t0 = v.alloc(); t1 = v.alloc(); t2 = v.alloc()
        M(f"""
        v_lshlrev_b32 v{self.vL16}, 4, v{L}
        v_lshrrev_b32 v{t0}, 3, v{L}
        v_lshlrev_b32 v{t0}, 10, v{t0}
        v_and_b32 v{t1}, 7, v{L}
        v_lshrrev_b32 v{t2}, 4, v{L}
        v_xor_b32 v{t1}, v{t1}, v{t2}
        v_lshlrev_b32 v{t1}, 4, v{t1}
        v_add_u32 v{self.vXo[0]}, v{t0}, v{t1}
        v_xor_b32 v{self.vXo[1]}, 64, v{self.vXo[0]}
        v_mul_u32_u24 v{t0}, 3584, v{t2}
        v_and_b32 v{t1}, 15, v{L}
        v_lshlrev_b32 v{t2}, 2, v{t2}
        v_xor_b32 v{t1}, v{t1}, v{t2}
        v_lshlrev_b32 v{t1}, 4, v{t1}
        v_add_u32 v{self.vWo}, v{t0}, v{t1}
        v_add_u32 v{self.vXo4[2]}, {2 * 7168}, v{self.vXo4[0]}
        v_add_u32 v{self.vXo4[3]}, {3 * 7168}, v{self.vXo4[1]}
        v_add_u32 v{self.vXo4[1]}, 7168, v{self.vXo4[1]}
        v_add_u32 v{self.vWo4[1]}, {13312}, v{self.vWo4[0]}
        v_add_u32 v{self.vWo4[2]}, {2 * 13312}, v{self.vWo4[0]}
        v_add_u32 v{self.vWo4[3]}, {3 * 13312}, v{self.vWo4[0]}
        """)
        v.free(t0); v.free(t1); v.free(t2)
        self.sXlds = s.alloc(); self.sXsrc = s.alloc(); self.sWsrc = s.alloc()
        self.sWf = s.alloc(); self.sWl = s.alloc()
        self.sD0 = s.alloc(); self.sCh = s.alloc(); self.sHh = s.alloc(); self.sD = s.alloc()
        self.sM = s.alloc(); self.sN = s.alloc(); self.sW2src = s.alloc(); self.sW2lds = s.alloc()
        M(f"""
        s_lshl_b32 s{self.sXlds}, s{sV}, 12
        s_lshl_b32 s{self.sXsrc}, s{sI}, 17
        s_lshl_b32 s{T[0]}, s{sV}, 15
        s_add_u32 s{self.sXsrc}, s{self.sXsrc}, s{T[0]}
        s_mul_i32 s{self.sWsrc}, s{sV}, {16 * 3584}
        s_lshl_b32 s{T[0]}, s{sJ}, 8
        s_add_u32 s{self.sWsrc}, s{self.sWsrc}, s{T[0]}
        s_lshr_b32 s{self.sWf}, s{sV}, 1
        s_and_b32 s{self.sWl}, s{sV}, 1
        s_lshl_b32 s{self.sD0}, s{sC}, 6
        s_lshl_b32 s{T[0]}, s{sQ}, 1
        s_add_u32 s{self.sD0}, s{self.sD0}, s{T[0]}
        s_lshr_b32 s{self.sCh}, s{sV}, 1
        s_and_b32 s{self.sHh}, s{sV}, 1
        s_add_u32 s{self.sD}, s{self.sD0}, s{self.sCh}
        s_and_b32 s{self.sM}, s{sQ}, 3
        s_lshl_b32 s{T[0]}, s{sC}, 2
        s_add_u32 s{self.sM}, s{self.sM}, s{T[0]}
        s_lshr_b32 s{self.sN}, s{sQ}, 2
        s_mul_i32 s{self.sW2src}, s{sV}, {448 * 1024}
        s_lshl_b32 s{T[0]}, s{self.sN}, 7
        s_add_u32 s{self.sW2src}, s{self.sW2src}, s{T[0]}
        s_lshl_b32 s{self.sW2lds}, s{sV}, 13
        """)
        self.sRot1 = s.alloc(); self.sRot2 = s.alloc(); self.sXc = s.alloc(); self.sWc = s.alloc(); self.sW2r = s.alloc()
        M(f"""
        s_lshr_b32 s{T[0]}, s{sQ}, 2
        s_and_b32 s{T[1]}, s{sQ}, 3
        s_lshl_b32 s{T[1]}, s{T[1]}, 1
        s_add_u32 s{T[0]}, s{T[0]}, s{T[1]}
        s_and_b32 s{self.sRot1}, s{T[0]}, {self.opt.get('rot1mask', 7)}
        s_sub_u32 s{T[1]}, s{T[0]}, 7
        s_cmp_ge_u32 s{T[0]}, 7
        s_cselect_b32 s{self.sRot2}, s{T[1]}, s{T[0]}
        """)
        self.g1_addr()
        I("s_waitcnt lgkmcnt(0)")
        self.stamp("kernarg")

    def srd(self, r, p, sz):
        self.M(f"""
        s_mov_b32 s{r}, s{p}
        s_and_b32 s{r+1}, s{p+1}, 0xffff
        s_mov_b32 s{r+2}, {sz}
        s_mov_b32 s{r+3}, 0x20000
        """)

    def ring_items(self, c):
        slot = (c % 4) * 32768
        it = []
        for u in range(4):
            def f(gg, u=u):
                if u == 0:
                    gg.I(f"s_add_u32 s{self.sXc}, s{self.sRot1}, {c}")
                    gg.I(f"s_and_b32 s{self.sXc}, s{self.sXc}, 7")
                    gg.I(f"s_add_u32 m0, s{self.sXlds}, {slot}")
                    gg.I(f"s_mul_i32 s{self.sWc}, s{self.sXc}, {64 * 3584}")
                    gg.I(f"s_lshl_b32 s{self.sXc}, s{self.sXc}, 7")
                    gg.I(f"s_add_u32 s{self.sXc}, s{self.sXc}, s{self.sXsrc}")
                    gg.I(f"s_add_u32 s{self.sWc}, s{self.sWc}, s{self.sWsrc}")
                return gg.I(f"buffer_load_dwordx4 v{self.vXo4[u]}, s[{self.rX}:{self.rX+3}], s{self.sXc} offen offset:{u*1024} lds")
            it.append(f)
        for u in range(4):
            def f(gg, u=u):
                if u == 0: gg.I(f"s_add_u32 m0, s{self.sXlds}, {slot + 16384}")
                return gg.I(f"buffer_load_dwordx4 v{self.vWo4[u]}, s[{self.rW1}:{self.rW1+3}], s{self.sWc} offen offset:{u*1024} lds")
            it.append(f)
        return it
    def w2_items(self, r, ldsbase):
        B = self.sB; it = []
        self.w2_lds[r] = ldsbase
        for c in range(8):
            def f(gg, c=c):
                if c == 0:
                    gg.I(f"s_add_u32 s{self.sW2r}, s{self.sRot2}, {r}")
                    gg.I(f"s_sub_u32 s{B[0]}, s{self.sW2r}, 7")
                    gg.I(f"s_cmp_ge_u32 s{self.sW2r}, 7")
                    gg.I(f"s_cselect_b32 s{self.sW2r}, s{B[0]}, s{self.sW2r}")
                    gg.I(f"s_add_u32 m0, s{self.sW2lds}, {ldsbase}")
                    gg.I(f"s_lshl_b32 s{self.sW2r}, s{self.sW2r}, 16")
                    gg.I(f"s_add_u32 s{self.sW2r}, s{self.sW2r}, s{self.sW2src}")
                if c == 4:
                    gg.I(f"s_add_u32 m0, s{self.sW2lds}, {ldsbase + 4096}")
                    gg.I(f"s_add_u32 s{self.sW2r}, s{self.sW2r}, 32768")
                return gg.I(f"buffer_load_dwordx4 v{self.vW2o4[c & 3]}, s[{self.rW2}:{self.rW2+3}], s{self.sW2r} offen offset:{(c & 3)*1024} lds")
            it.append(f)
        return it
    def issue_now(self, items):
        t = None
        for f in items:
            t = f(self.g)
            for w in self.windows:
                if w['active']: w['foreign'] += 1
        return t
    def w2_bg_issue(self, r, ldsbase, after=None):
        its = self.w2_items(r, ldsbase)
        if after is not None:
            self.bg.append(lambda: self.g.wait_lg(self.tl_w2[after]))
        for k, f in enumerate(its):
            def e(f=f, k=k):
                t = self.issue_now([f])
                if k == 7: self.tk_w2[r] = t
            self.bg.append(e)
    def w2_read_items(self, r):
        base = self.w2_lds[r]; it = []
        half = base // 65536
        for st in range(4):
            for dt in range(2):
                for hf in range(2):
                    a = self.aW2 + (r * 4 + st) * 8 + dt * 4 + 2 * hf
                    off = base - half * 65536 + (16 * st + 4 * hf) * 128
                    def f(gg, a=a, off=off, dt=dt):
                        return gg.I(f"ds_read_b64_tr_b16 a[{a}:{a+1}], v{self.vTa[half][dt]} offset:{off}")
                    it.append(f)
        return it
    def w2_bg_read(self, r):
        its = self.w2_read_items(r)
        def w(): self.wvm(self.tk_w2[r])
        self.bg.append(w)
        for k in range(0, 16, 2):
            def e(k=k):
                its[k](self.g); t = its[k + 1](self.g)
                if k == 14: self.tl_w2[r] = t
            self.bg.append(e)

    def w2_addr(self):
        I = self.I; M = self.M; v = self.v; T = self.sT; L = self.vLane
        self.vW2o4 = [v.alloc() for _ in range(4)]; self.vW2o = self.vW2o4[0]; self.vTa = [[v.alloc(), v.alloc()] for _ in range(3)]
        self.tk_w2 = {}; self.tl_w2 = {}; self.w2_lds = {}
        t0 = v.alloc(); t1 = v.alloc(); t2 = v.alloc()
        M(f"""
        v_lshrrev_b32 v{t0}, 3, v{L}
        v_lshlrev_b32 v{t0}, 10, v{t0}
        v_lshrrev_b32 v{t1}, 4, v{L}
        v_and_b32 v{t1}, 1, v{t1}
        v_lshlrev_b32 v{t1}, 2, v{t1}
        v_and_b32 v{t2}, 7, v{L}
        v_xor_b32 v{t1}, v{t1}, v{t2}
        v_lshlrev_b32 v{t1}, 4, v{t1}
        v_add_u32 v{self.vW2o}, v{t0}, v{t1}
        v_lshrrev_b32 v{t0}, 5, v{L}
        v_lshlrev_b32 v{t0}, 3, v{t0}
        v_lshrrev_b32 v{t1}, 2, v{L}
        v_and_b32 v{t1}, 3, v{t1}
        v_add_u32 v{t0}, v{t0}, v{t1}
        v_lshlrev_b32 v{t0}, 7, v{t0}
        v_lshrrev_b32 v{t2}, 4, v{L}
        v_and_b32 v{t2}, 1, v{t2}
        v_lshlrev_b32 v{t2}, 5, v{t2}
        v_add_u32 v{t0}, v{t0}, v{t2}
        v_and_b32 v{t2}, 3, v{L}
        v_lshlrev_b32 v{t2}, 3, v{t2}
        v_add_u32 v{t0}, v{t0}, v{t2}
        v_add_u32 v{t0}, s{self.sW2lds}, v{t0}
        v_lshrrev_b32 v{t1}, 1, v{t1}
        s_lshr_b32 s{T[0]}, s{self.sV}, 1
        v_xor_b32 v{t1}, s{T[0]}, v{t1}
        v_lshlrev_b32 v{t1}, 6, v{t1}
        v_add_u32 v{self.vTa[0][0]}, v{t0}, v{t1}
        v_xor_b32 v{t1}, 64, v{t1}
        v_add_u32 v{self.vTa[0][1]}, v{t0}, v{t1}
        """)
        for h in (1, 2):
            for d in range(2): I(f"v_add_u32 v{self.vTa[h][d]}, {h * 65536}, v{self.vTa[0][d]}")
        for u in range(1, 4): I(f"v_add_u32 v{self.vW2o4[u]}, {u * 7168}, v{self.vW2o4[0]}")
        for r in (t0, t1, t2): v.free(r)
        self.aW2 = self.a.alloc(224, 4)

    def g1_addr(self):
        I = self.I; M = self.M; v = self.v; T = self.sT; L = self.vLane
        sWf, sWl = self.sWf, self.sWl
        self.vXa = vXa = [[v.alloc() for _ in range(4)] for _ in range(2)]
        self.vWa = vWa = [[v.alloc() for _ in range(2)] for _ in range(2)]
        t0 = v.alloc(); t1 = v.alloc(); t2 = v.alloc()
        M(f"""
        v_and_b32 v{t0}, 31, v{L}
        v_lshrrev_b32 v{t1}, 1, v{t0}
        v_and_b32 v{t1}, 7, v{t1}
        v_lshrrev_b32 v{t2}, 5, v{L}
        v_xor_b32 v{t1}, v{t1}, v{t2}
        s_lshl_b32 s{T[0]}, s{sWl}, 13
        v_lshlrev_b32 v{t0}, 7, v{t0}
        v_add_u32 v{t0}, s{T[0]}, v{t0}
        """)
        for st in range(4):
            M(f"""
            v_xor_b32 v{t2}, {2*st}, v{t1}
            v_lshlrev_b32 v{t2}, 4, v{t2}
            v_add_u32 v{vXa[0][st]}, v{t0}, v{t2}
            v_add_u32 v{vXa[1][st]}, 0x10000, v{vXa[0][st]}
            """)
        M(f"""
        v_lshrrev_b32 v{t0}, 5, v{L}
        v_lshlrev_b32 v{t0}, 3, v{t0}
        v_lshrrev_b32 v{t1}, 2, v{L}
        v_and_b32 v{t1}, 3, v{t1}
        v_add_u32 v{t0}, v{t0}, v{t1}
        v_lshlrev_b32 v{t0}, 8, v{t0}
        v_lshrrev_b32 v{t2}, 4, v{L}
        v_and_b32 v{t2}, 1, v{t2}
        v_lshlrev_b32 v{t2}, 5, v{t2}
        v_add_u32 v{t0}, v{t0}, v{t2}
        v_and_b32 v{t2}, 3, v{L}
        v_lshlrev_b32 v{t2}, 3, v{t2}
        v_add_u32 v{t0}, v{t0}, v{t2}
        v_add_u32 v{t0}, 16384, v{t0}
        s_lshl_b32 s{T[0]}, s{sWf}, 1
        """)
        for ftl in range(2):
            M(f"""
            s_xor_b32 s{T[1]}, s{sWl}, {ftl}
            s_add_u32 s{T[1]}, s{T[0]}, s{T[1]}
            v_xor_b32 v{t2}, s{T[1]}, v{t1}
            v_lshlrev_b32 v{t2}, 6, v{t2}
            v_add_u32 v{vWa[0][ftl]}, v{t0}, v{t2}
            v_add_u32 v{vWa[1][ftl]}, 0x10000, v{vWa[0][ftl]}
            """)
        self.sel = sel = v.alloc(4, 4)
        M(f"""
        v_and_b32 v{t0}, 15, v{L}
        v_lshrrev_b32 v{t1}, 4, v{L}
        v_and_b32 v{t1}, 1, v{t1}
        v_cmp_eq_u32 vcc, v{t0}, v{t1}
        v_mov_b32 v{t2}, 0x3f803f80
        v_cndmask_b32 v{sel}, 0, v{t2}, vcc
        v_mov_b32 v{sel+1}, v{sel}
        v_mov_b32 v{sel+2}, v{sel}
        v_mov_b32 v{sel+3}, v{sel}
        """)
        for r in (t0, t1, t2): v.free(r)

    def late_addr(self):
        I = self.I; M = self.M; v = self.v; T = self.sT; L = self.vLane
        t0 = v.alloc(); t1 = v.alloc(); t2 = v.alloc()
        self.kwa0 = v.alloc()
        M(f"""
        v_lshlrev_b32 v{t0}, 2, v{L}
        s_mul_i32 s{T[0]}, s{self.sCh}, {self.XYCH}
        s_lshl_b32 s{T[1]}, s{self.sHh}, 8
        s_add_u32 s{T[0]}, s{T[0]}, s{T[1]}
        s_add_u32 s{T[0]}, s{T[0]}, {self.XY}
        v_add_u32 v{self.kwa0}, s{T[0]}, v{t0}
        """)
        self.kR0 = v.alloc(); self.kT1 = v.alloc()
        M(f"""
        v_and_b32 v{t0}, 15, v{L}
        v_lshrrev_b32 v{t1}, 4, v{L}
        v_xor_b32 v{t1}, v{t1}, v{t0}
        v_lshlrev_b32 v{t1}, 4, v{t1}
        v_lshlrev_b32 v{t0}, 9, v{t0}
        s_mul_i32 s{T[0]}, s{self.sCh}, {self.XYCH}
        s_add_u32 s{T[0]}, s{T[0]}, {self.XY}
        v_add3_u32 v{self.kR0}, v{t0}, v{t1}, s{T[0]}
        """)
        v.free(self.kT1)
        self.kvb = vb = v.alloc(); self.kvs = vs = v.alloc()
        gi = t2
        M(f"""
        s_cmp_eq_u32 s{self.sHh}, 0
        s_cselect_b32 s{T[2]}, 0, {2*516}
        s_cselect_b32 s{T[3]}, {2*4}, {2*1536}
        s_cselect_b32 s{T[4]}, 2, 512
        v_lshrrev_b32 v{gi}, 4, v{L}
        v_mov_b32 v{vb}, s{T[2]}
        v_mov_b32 v{vs}, s{T[4]}
        v_mov_b32 v{t0}, s{T[3]}
        v_cmp_eq_u32 vcc, 1, v{gi}
        v_cndmask_b32 v{vb}, v{vb}, v{t0}, vcc
        v_mov_b32 v{t0}, {2*256}
        v_mov_b32 v{t1}, 4
        v_cmp_eq_u32 vcc, 2, v{gi}
        v_cndmask_b32 v{vb}, v{vb}, v{t0}, vcc
        v_cndmask_b32 v{vs}, v{vs}, v{t1}, vcc
        v_mov_b32 v{t0}, {2*512}
        v_mov_b32 v{t1}, 512
        v_cmp_eq_u32 vcc, 3, v{gi}
        v_cndmask_b32 v{vb}, v{vb}, v{t0}, vcc
        v_cndmask_b32 v{vs}, v{vs}, v{t1}, vcc
        v_and_b32 v{t0}, 15, v{L}
        v_lshlrev_b32 v{t0}, 4, v{t0}
        s_mul_i32 s{T[0]}, s{self.sCh}, {self.TABCH}
        s_add_u32 s{T[0]}, s{T[0]}, {self.TAB + 2}
        v_add3_u32 v{vb}, v{vb}, v{t0}, s{T[0]}
        """)
        self.ktw = v.alloc(); self.kta = [v.alloc() for _ in range(4)]
        tz = t2; P_ = self.sP
        M(f"""
        v_cmp_le_u32 vcc, 3, v{L}
        v_mov_b32 v{t0}, {self.TABCH}
        v_cndmask_b32 v{tz}, 0, v{t0}, vcc
        v_add_u32 v{tz}, {self.TAB}, v{tz}
        v_mov_b32 v{t0}, {self.KRCH - 48}
        v_cndmask_b32 v{self.ktw}, 0, v{t0}, vcc
        v_lshlrev_b32 v{t0}, 4, v{L}
        v_add_u32 v{self.ktw}, v{self.ktw}, v{t0}
        v_add_u32 v{self.ktw}, {4096 + self.KR}, v{self.ktw}
        v_cmp_eq_u32 vcc, 0, v{L}
        v_cmp_eq_u32 s[{P_}:{P_+1}], 3, v{L}
        s_or_b64 vcc, vcc, s[{P_}:{P_+1}]
        """)
        for idx, kk in enumerate((3, 2, 1, 0)):
            I(f"v_add_u32 v{t0}, {2 * (kk + 1)}, v{tz}")
            I(f"v_cndmask_b32 v{self.kta[idx]}, v{tz}, v{t0}, vcc")
        self.vKA = vKA = v.alloc(); self.vUB = vUB = v.alloc(); self.vSo = v.alloc()
        M(f"""
        v_and_b32 v{t0}, 3, v{L}
        v_mul_u32_u24 v{vKA}, {self.KRP}, v{t0}
        v_lshrrev_b32 v{t1}, 4, v{L}
        v_lshlrev_b32 v{t1}, 4, v{t1}
        v_sub_u32 v{vKA}, v{vKA}, v{t1}
        v_and_b32 v{t0}, 15, v{L}
        v_lshrrev_b32 v{t2}, 2, v{t0}
        v_lshlrev_b32 v{t2}, 3, v{t2}
        v_sub_u32 v{vKA}, v{vKA}, v{t2}
        s_mul_i32 s{T[0]}, s{self.sCh}, {self.KRCH}
        s_lshl_b32 s{T[1]}, s{self.sHh}, 8
        s_sub_u32 s{T[0]}, s{T[0]}, s{T[1]}
        s_add_u32 s{T[0]}, s{T[0]}, {self.KR + 2 * 2056 - 64 * 63 + 256}
        v_add_u32 v{vKA}, s{T[0]}, v{vKA}
        v_lshlrev_b32 v{vUB}, 5, v{t0}
        v_sub_u32 v{vUB}, v{vUB}, v{t1}
        s_mul_i32 s{T[0]}, s{self.sCh}, {self.UCH}
        s_sub_u32 s{T[0]}, s{T[0]}, s{T[1]}
        s_add_u32 s{T[0]}, s{T[0]}, {self.U + 2 * 264 - 192}
        v_add_u32 v{vUB}, s{T[0]}, v{vUB}
        v_lshlrev_b32 v{self.vSo}, 5, v{t0}
        v_lshrrev_b32 v{t1}, 1, v{t1}
        v_add_u32 v{self.vSo}, v{self.vSo}, v{t1}
        """)
        for r in (t0, t1, t2): v.free(r)

    def poison_s(self):
        I = self.I; M = self.M; v = self.v; T = self.sT
        d = v.alloc(4, 4); a = v.alloc()
        for k in range(4): I(f"v_mov_b32 v{d+k}, -1")
        M(f"""
        v_lshlrev_b32 v{a}, 4, v0
        s_lshl_b32 s{T[0]}, s{self.sD0}, 12
        s_add_u32 s{T[0]}, s{T[0]}, {WS_S}
        s_add_u32 s{T[1]}, s{T[0]}, 4096
        """)
        I(f"buffer_store_dwordx4 v[{d}:{d+3}], v{a}, s[{self.rWS}:{self.rWS+3}], s{T[0]} offen sc1")
        I(f"buffer_store_dwordx4 v[{d}:{d+3}], v{a}, s[{self.rWS}:{self.rWS+3}], s{T[1]} offen sc1")
        v.free(d, 4); v.free(a)

    def kg_expand_addr(self):
        I = self.I; M = self.M; v = self.v
        self.xa = [v.alloc() for _ in range(12)]
        f0 = v.alloc(); f1 = v.alloc(); jb = v.alloc()
        M(f"""
        v_lshlrev_b32 v{jb}, 3, v0
        v_sub_u32 v{jb}, 2048, v{jb}
        """)
        for k in range(0, 12, 2):
            e0 = k - 4; e1 = k - 3
            M(f"""
            v_add_u32 v{f0}, {-e0}, v{jb}
            v_add_u32 v{f1}, {-e1}, v{jb}
            v_min_u32 v{f0}, 2048, v{f0}
            v_min_u32 v{f1}, 2048, v{f1}
            v_cvt_f32_u32 v{f0}, v{f0}
            v_cvt_f32_u32 v{f1}, v{f1}
            v_cvt_pk_bf16_f32 v{f0}, v{f0}, v{f1}
            v_and_b32 v{f1}, 0xffff0000, v{f0}
            v_lshlrev_b32 v{f0}, 16, v{f0}
            v_cvt_u32_f32 v{f0}, v{f0}
            v_cvt_u32_f32 v{f1}, v{f1}
            v_lshlrev_b32 v{f0}, 1, v{f0}
            v_lshlrev_b32 v{f1}, 1, v{f1}
            v_add_u32 v{self.xa[k]}, {self.TAB + 2}, v{f0}
            v_add_u32 v{self.xa[k+1]}, {self.TAB + 2}, v{f1}
            """)
        v.free(f0); v.free(f1); v.free(jb)

    def nonce_issue(self):
        v = self.v
        self.vNon = v.alloc(2, 2); ta = v.alloc()
        self.I(f"v_mov_b32 v{ta}, 0")
        self.tk_non = self.I(f"global_load_dwordx2 v[{self.vNon}:{self.vNon+1}], v{ta}, s[{self.pDbg}:{self.pDbg+1}] sc1")
        self.vNonA = ta
    def nonce_check(self):
        g = self.g; v = self.v
        tv = self.vNon; ta = self.vNonA
        lp = g.label("L_np"); dn = g.label("L_nd")
        self.wvm(self.tk_non)
        g.M(f"""
        v_readfirstlane_b32 s{self.sNon}, v{tv}
        v_readfirstlane_b32 s{self.sNon+1}, v{tv+1}
        s_mov_b32 s{self.sT[1]}, 0
        s_cmp_lg_u32 s{self.sNon}, 0
        s_cbranch_scc1 {dn}
        """)
        g.L(lp)
        g.raw(f"global_load_dwordx2 v[{tv}:{tv+1}], v{ta}, s[{self.pDbg}:{self.pDbg+1}] sc1")
        g.M(f"""
        s_waitcnt vmcnt(0)
        v_readfirstlane_b32 s{self.sNon}, v{tv}
        v_readfirstlane_b32 s{self.sNon+1}, v{tv+1}
        s_add_u32 s{self.sT[1]}, s{self.sT[1]}, 1
        s_cmp_lg_u32 s{self.sNon}, 0
        s_cbranch_scc1 {dn}
        s_cmp_gt_u32 s{self.sT[1]}, {SPIN}
        s_cbranch_scc1 {dn}
        s_sleep 2
        s_branch {lp}
        """)
        g.L(dn)
        v.free(tv, 2); v.free(ta)
    def poll_issue(self, addr_v, n=1, stride=512):
        v = self.v
        regs = [v.alloc(2, 2) for _ in range(n)]
        t = None
        for k, r in enumerate(regs):
            t = self.I(f"buffer_load_dwordx2 v[{r}:{r+1}], v{addr_v}, s[{self.rWS}:{self.rWS+3}], 0 offen offset:{k*stride} sc1")
        return (regs, t, addr_v, stride)
    def poll_check(self, h):
        g = self.g; v = self.v
        regs, t, addr_v, stride = h
        N = self.sNon; P = self.sP
        lp = g.label("L_pp"); dn = g.label("L_pd")
        def cmp():
            g.I(f"v_cmp_eq_u64 vcc, s[{N}:{N+1}], v[{regs[0]}:{regs[0]+1}]")
            for r in regs[1:]:
                g.I(f"v_cmp_eq_u64 s[{P}:{P+1}], s[{N}:{N+1}], v[{r}:{r+1}]")
                g.I(f"s_and_b64 vcc, vcc, s[{P}:{P+1}]")
            g.I("s_cmp_eq_u64 vcc, exec")
        self.wvm(t)
        cmp()
        g.I(f"s_cbranch_scc1 {dn}")
        g.I(f"s_mov_b32 s{self.sT[1]}, 0")
        g.L(lp)
        for k, r in enumerate(regs):
            g.raw(f"buffer_load_dwordx2 v[{r}:{r+1}], v{addr_v}, s[{self.rWS}:{self.rWS+3}], 0 offen offset:{k*stride} sc1")
        g.I("s_waitcnt vmcnt(0)")
        cmp()
        g.M(f"""
        s_cbranch_scc1 {dn}
        s_add_u32 s{self.sT[1]}, s{self.sT[1]}, 1
        s_cmp_gt_u32 s{self.sT[1]}, {SPIN}
        s_cbranch_scc1 {dn}
        s_sleep 1
        s_branch {lp}
        """)
        g.L(dn)
        for r in regs: v.free(r, 2)
        v.free(addr_v)
    def set_flag(self, base, idx_sgpr):
        g = self.g; v = self.v
        tv = v.alloc(2, 2); ta = v.alloc()
        lab = g.label("L_sf")
        g.M(f"""
        s_cmp_lg_u32 s{self.sV}, 0
        s_cbranch_scc1 {lab}
        s_lshl_b32 s{self.sT[1]}, s{idx_sgpr}, 3
        s_add_u32 s{self.sT[1]}, s{self.sT[1]}, {base}
        v_mov_b32 v{ta}, s{self.sT[1]}
        v_mov_b32 v{tv}, s{self.sNon}
        v_mov_b32 v{tv+1}, s{self.sNon+1}
        s_mov_b64 s[{self.sEx}:{self.sEx+1}], exec
        s_mov_b64 exec, 1
        """)
        g.raw(f"buffer_store_dwordx2 v[{tv}:{tv+1}], v{ta}, s[{self.rWS}:{self.rWS+3}], 0 offen sc1")
        g.I(f"s_mov_b64 exec, s[{self.sEx}:{self.sEx+1}]")
        g.L(lab)
        v.free(tv, 2); v.free(ta)

    def ln_phase(self):
        g = self.g; I = self.I; M = self.M; v = self.v; T = self.sT
        sV = self.sV
        if self.opt.get('touch', 1): self.tlb_touch()
        self.srd(self.rX, self.pX, 2 << 20)
        self.lnx = [v.alloc(4, 4), v.alloc(4, 4)]
        xa, xb = self.lnx
        self.sRow = self.s.alloc()
        M(f"""
        s_lshl_b32 s{self.sRow}, s{self.sLb}, 3
        s_lshl_b32 s{T[0]}, s{sV}, 1
        s_add_u32 s{self.sRow}, s{self.sRow}, s{T[0]}
        s_lshl_b32 s{T[0]}, s{self.sRow}, 10
        """)
        I(f"buffer_load_dwordx4 v[{xa}:{xa+3}], v{self.vL16}, s[{self.rX}:{self.rX+3}], s{T[0]} offen")
        self.tk_lnx = I(f"buffer_load_dwordx4 v[{xb}:{xb+3}], v{self.vL16}, s[{self.rX}:{self.rX+3}], s{T[0]} offen offset:1024")
        self.srd(self.rW1, self.pW1, 512 * 1792 * 2)
        self.tk_chunk = {}
        self.tk_chunk[0] = self.issue_now(self.ring_items(0))
        self.stamp("p_c0")
        self.srd(self.rWS, self.pWs, WS_SIZE)
        self.srd(self.rW2, self.pW2, 512 * 1792 * 2)
        lab = g.label("L_non")
        tv = v.alloc(2, 2); ta = v.alloc()
        g.M(f"""
        s_or_b32 s{T[0]}, s2, s{sV}
        s_cmp_lg_u32 s{T[0]}, 0
        s_cbranch_scc1 {lab}
        s_memrealtime s[{self.sP2}:{self.sP2+1}]
        s_waitcnt lgkmcnt(0)
        s_or_b32 s{self.sP2}, s{self.sP2}, 1
        v_mov_b32 v{tv}, s{self.sP2}
        v_mov_b32 v{tv+1}, s{self.sP2+1}
        v_mov_b32 v{ta}, 0
        s_mov_b64 s[{self.sEx}:{self.sEx+1}], exec
        s_mov_b64 exec, 1
        """)
        g.raw(f"global_store_dwordx2 v{ta}, v[{tv}:{tv+1}], s[{self.pDbg}:{self.pDbg+1}] sc1")
        g.I(f"s_mov_b64 exec, s[{self.sEx}:{self.sEx+1}]")
        g.L(lab)
        v.free(tv, 2); v.free(ta)
        PRE = self.opt.get('pre', 2); C1E = self.opt.get('c1early', 0)
        if C1E: self.tk_chunk[1] = self.issue_now(self.ring_items(1))
        self.stamp("p_c1")
        order = self.opt.get('porder', 'AC')
        for ch in order:
            if ch == 'P': self.kg_params_issue(); self.stamp("p_par")
            if ch == 'A':
                self.kg_expand_addr(); self.w2_addr(); self.late_addr(); self.stamp("p_addr")
            if ch == 'X': self.poison_s(); self.stamp("p_poi")
            if ch == 'C' and self.opt.get('codepf', True): self.code_prefetch(); self.stamp("p_pf")
        self.deferred = [ch for ch in 'PX' if ch not in order]
        if not C1E: self.tk_chunk[1] = self.issue_now(self.ring_items(1))
        if PRE >= 3: self.tk_chunk[2] = self.issue_now(self.ring_items(2))
        self.stamp("issued")

    def tlb_touch(self):
        g = self.g; v = self.v
        z = v.alloc(); d = v.alloc()
        self.touch_regs = (z, d)
        g.I(f"v_mov_b32 v{z}, 0")
        lvl = self.opt.get('touch', 1)
        if lvl < 3:
            ptrs = [self.pX, self.pW1]
            if lvl >= 2: ptrs += [self.pW2, self.pAre, self.pAim, self.pBre, self.pBim, self.pCre, self.pCim, self.pLdt, self.pDsk, self.pOut]
            for p in ptrs:
                self.I(f"global_load_dword v{d}, v{z}, s[{p}:{p+1}]")
        else:
            lists = [[self.pX, self.pW2, ('ws', 0), ('ws', 4), self.pAre, self.pCim],
                     [self.pW1, ('ws', 1), ('ws', 5), self.pAim, self.pLdt],
                     [('ws', 2), ('ws', 6), self.pBre, self.pDsk, self.pOut],
                     [('ws', 3), self.pBim, self.pCre, self.pDbg]]
            skip = self.opt.get('tskip', '')
            def keep(p):
                if isinstance(p, tuple): return 'w' not in skip
                if p == self.pDbg: return 'd' not in skip
                if p == self.pW2: return '2' not in skip
                if p == self.pOut: return 'o' not in skip
                if p in (self.pX, self.pW1): return 'x' not in skip
                return 'p' not in skip
            lists = [[p for p in l if keep(p)] for l in lists]
            P = self.sP
            end = g.label("L_tt")
            for w in range(4):
                nxt = g.label("L_tw")
                g.I(f"s_cmp_lg_u32 s{self.sV}, {w}"); g.I(f"s_cbranch_scc1 {nxt}")
                for p in lists[w]:
                    if isinstance(p, tuple):
                        g.I(f"s_add_u32 s{P}, s{self.pWs}, {(p[1] + self.opt.get('tpage', 0)) * (2 << 20) + self.opt.get('toff', 0)}")
                        g.I(f"s_addc_u32 s{P+1}, s{self.pWs+1}, 0")
                        g.raw(f"global_load_dword v{d}, v{z}, s[{P}:{P+1}]")
                    else:
                        g.raw(f"global_load_dword v{d}, v{z}, s[{p}:{p+1}]")
                g.I(f"s_branch {end}")
                g.L(nxt)
            g.L(end)
        self.stamp("p_touch")

    def ln_stream(self):
        v = self.v; s = self.s; T = self.sT; LNX = self.LNX
        xa, xb = self.lnx; X = [xa, xb]
        p1a, p1b, p2 = [], [], []
        def add(lst, text):
            for ln in text.strip().split('\n'):
                ln = ln.strip()
                if ln: lst.append(lambda gg, ln=ln: gg.I(ln))
        ones = s.alloc(); sm = [s.alloc() for _ in range(4)]
        s1 = [v.alloc(), v.alloc()]; s2 = [v.alloc(), v.alloc()]
        add(p1a, f"s_mov_b32 s{ones}, 0x3f803f80")
        for r in range(2):
            add(p1a, f"v_dot2_f32_bf16 v{s1[r]}, v{X[r]}, s{ones}, 0")
            add(p1a, f"v_dot2_f32_bf16 v{s2[r]}, v{X[r]}, v{X[r]}, 0")
        for k in range(1, 4):
            for r in range(2):
                add(p1a, f"v_dot2_f32_bf16 v{s1[r]}, v{X[r]+k}, s{ones}, v{s1[r]}")
                add(p1a, f"v_dot2_f32_bf16 v{s2[r]}, v{X[r]+k}, v{X[r]+k}, v{s2[r]}")
        red = [s1[0], s2[0], s1[1], s2[1]]
        for mod in ("row_shr:1 row_mask:0xf bank_mask:0xf bound_ctrl:0", "row_shr:2 row_mask:0xf bank_mask:0xf bound_ctrl:0",
                    "row_shr:4 row_mask:0xf bank_mask:0xf bound_ctrl:0", "row_shr:8 row_mask:0xf bank_mask:0xf bound_ctrl:0",
                    "row_bcast:15 row_mask:0xa bank_mask:0xf", "row_bcast:31 row_mask:0xc bank_mask:0xf"):
            for r in red: add(p1a, f"v_add_f32_dpp v{r}, v{r}, v{r} {mod}")
        for r, sg in zip(red, sm): add(p1a, f"v_readlane_b32 s{sg}, v{r}, 63")
        st = [v.alloc(4, 4), v.alloc(4, 4)]
        mf = [v.alloc(), v.alloc()]; tm = [v.alloc(), v.alloc()]; tn = [v.alloc(), v.alloc()]
        inv512 = hx(1.0 / 512)
        seq = lambda r: f"""
            v_mov_b32 v{tm[r]}, s{sm[2*r]}
            v_mul_f32 v{tm[r]}, {inv512}, v{tm[r]}
            v_mov_b32 v{tn[r]}, s{sm[2*r+1]}
            v_mul_f32 v{tn[r]}, {inv512}, v{tn[r]}
            v_fma_f32 v{tn[r]}, -v{tm[r]}, v{tm[r]}, v{tn[r]}
            v_max_f32 v{tn[r]}, 0, v{tn[r]}
            v_cvt_pk_bf16_f32 v{tm[r]}, v{tm[r]}, v{tm[r]}
            v_and_b32 v{mf[r]}, 0xffff0000, v{tm[r]}
            v_xor_b32 v{st[r]}, 0x80008000, v{tm[r]}
            v_cvt_pk_bf16_f32 v{tn[r]}, v{tn[r]}, v{tn[r]}
            v_and_b32 v{tn[r]}, 0xffff0000, v{tn[r]}
            v_add_f32 v{tn[r]}, {hx(1e-5)}, v{tn[r]}
            v_cvt_pk_bf16_f32 v{tn[r]}, v{tn[r]}, v{tn[r]}
            v_and_b32 v{tn[r]}, 0xffff0000, v{tn[r]}
            v_sqrt_f32 v{tn[r]}, v{tn[r]}
            v_cvt_pk_bf16_f32 v{tn[r]}, v{tn[r]}, v{tn[r]}
            v_and_b32 v{tn[r]}, 0xffff0000, v{tn[r]}
            v_rcp_f32 v{st[r]+1}, v{tn[r]}
            """.strip().split('\n')
        for la, lb_ in zip(seq(0), seq(1)):
            add(p1a, la); add(p1a, lb_)
        ta = v.alloc()
        pst = []
        add(pst, f"""
            v_mov_b32 v{st[0]+2}, s{self.sNon}
            v_mov_b32 v{st[0]+3}, s{self.sNon+1}
            v_mov_b32 v{st[1]+2}, s{self.sNon}
            v_mov_b32 v{st[1]+3}, s{self.sNon+1}
            s_lshl_b32 s{ones}, s{self.sRow}, 4
            s_add_u32 s{ones}, s{ones}, {WS_ST}
            v_lshlrev_b32 v{ta}, 28, v{self.vLane}
            """)
        def st_store(r):
            def f(gg):
                t = gg.I(f"buffer_store_dwordx4 v[{st[r]}:{st[r]+3}], v{ta}, s[{self.rWS}:{self.rWS+3}], s{ones} offen offset:{16*r} sc1")
                self.note_foreign(gg)
            return f
        pst.append(st_store(0)); pst.append(st_store(1))
        n = [v.alloc(8), v.alloc(8)]; dp = [v.alloc(), v.alloc()]
        for k in range(4):
            sq = []
            for r in range(2):
                lo = n[r] + 2 * k; hi = lo + 1
                sq.append(f"""
                v_lshlrev_b32 v{lo}, 16, v{X[r]+k}
                v_and_b32 v{hi}, 0xffff0000, v{X[r]+k}
                v_sub_f32 v{lo}, v{lo}, v{mf[r]}
                v_sub_f32 v{hi}, v{hi}, v{mf[r]}
                v_cvt_pk_bf16_f32 v{dp[r]}, v{lo}, v{hi}
                v_lshlrev_b32 v{lo}, 16, v{dp[r]}
                v_and_b32 v{hi}, 0xffff0000, v{dp[r]}
                v_mul_f32 v{lo}, v{lo}, v{st[r]+1}
                v_mul_f32 v{hi}, v{hi}, v{st[r]+1}
                """.strip().split('\n'))
            for la, lb_ in zip(*sq):
                add(p1b, la); add(p1b, lb_)
        wa = v.alloc()
        add(p1b, f"""
            s_lshl_b32 s{sm[0]}, s{self.sV}, 2
            s_add_u32 s{sm[0]}, s{sm[0]}, {LNX}
            v_add_u32 v{wa}, s{sm[0]}, v{self.vL16}
            """)
        for e in range(8):
            add(p1b, f"v_cvt_pk_bf16_f32 v{n[0]+e}, v{n[0]+e}, v{n[1]+e}")
            add(p1b, f"ds_write_b32 v{wa}, v{n[0]+e} offset:{e * 65 * 16}")
        ra = v.alloc(); ga = v.alloc(); u0 = v.alloc(4, 4); u1 = v.alloc(4, 4)
        add(p1b, f"""
            v_and_b32 v{ra}, 7, v0
            v_mul_u32_u24 v{ra}, 65, v{ra}
            v_lshrrev_b32 v{ga}, 3, v0
            v_add_u32 v{ra}, v{ra}, v{ga}
            v_lshlrev_b32 v{ra}, 4, v{ra}
            v_add_u32 v{ra}, {LNX}, v{ra}
            v_lshlrev_b32 v{ga}, 4, v0
            s_lshl_b32 s{sm[1]}, s{self.sLb}, 13
            """)
        tk = {}
        def rd(gg):
            gg.I(f"ds_read_b128 v[{u0}:{u0+3}], v{ra}")
            tk['u'] = gg.I(f"ds_read_b128 v[{u1}:{u1+3}], v{ra} offset:{32 * 16}")
        p2.append(rd)
        add(p2, f"v_add_u32 v{ra}, 4096, v{ga}")
        p3 = []
        def sto(gg):
            gg.wait_lg(tk['u'])
            gg.I(f"buffer_store_dwordx4 v[{u0}:{u0+3}], v{ga}, s[{self.rWS}:{self.rWS+3}], s{sm[1]} offen sc1")
            self.note_foreign(gg)
            t = gg.I(f"buffer_store_dwordx4 v[{u1}:{u1+3}], v{ra}, s[{self.rWS}:{self.rWS+3}], s{sm[1]} offen sc1")
            self.note_foreign(gg)
            if gg is self.g: self.tk_ln = t
        p3.append(sto)
        def free():
            for r_, n_ in ((xa, 4), (xb, 4), (st[0], 4), (st[1], 4), (n[0], 8), (n[1], 8), (u0, 4), (u1, 4)): v.free(r_, n_)
            for r_ in s1 + s2 + mf + tm + tn + dp + [wa, ta, ra, ga]: v.free(r_)
            for r_ in [ones] + sm: s.free(r_)
        return p1a, pst, p1b, p2, p3, free

    def note_foreign(self, gg):
        if gg is self.g:
            for w in self.windows:
                if w['active']: w['foreign'] += 1

    def code_prefetch(self):
        g = self.g; v = self.v; T = self.sT; P = self.sP2
        lab = g.label("L_pf"); here = g.label("L_here")
        d = v.alloc(4, 4); a = v.alloc()
        g.I(f"s_and_b32 s{T[0]}, s{self.sQ}, 7")
        g.I(f"s_cmp_lg_u32 s{T[0]}, 0")
        g.I(f"s_cbranch_scc1 {lab}")
        g.raw(f"s_getpc_b64 s[{P}:{P+1}]")
        g.raw(f"{here}:")
        g.raw(f"v_lshlrev_b32 v{a}, 4, v0")
        g.raw(f"s_mov_b32 s{T[0]}, (L_codeend - {here} + 4095) / 4096")
        lp = g.label("L_pfl")
        g.raw(f"{lp}:")
        g.raw(f"global_load_dwordx4 v[{d}:{d+3}], v{a}, s[{P}:{P+1}]")
        g.raw(f"v_add_u32 v{a}, 4096, v{a}")
        g.raw(f"s_sub_u32 s{T[0]}, s{T[0]}, 1")
        g.raw(f"s_cmp_lg_u32 s{T[0]}, 0")
        g.raw(f"s_cbranch_scc1 {lp}")
        g.L(lab)
        self.pf_regs = (d, a)

    def kg_params_issue(self):
        I = self.I; M = self.M; v = self.v; T = self.sT
        po = v.alloc(); pd = v.alloc()
        B = self.sB
        M(f"""
        s_lshl_b32 s{B[0]}, s{self.sD}, 8
        s_lshl_b32 s{B[1]}, s{self.sHh}, 7
        s_add_u32 s{B[0]}, s{B[0]}, s{B[1]}
        v_lshlrev_b32 v{po}, 1, v{self.vLane}
        v_add_u32 v{po}, s{B[0]}, v{po}
        s_lshl_b32 s{B[0]}, s{self.sD}, 1
        v_mov_b32 v{pd}, s{B[0]}
        """)
        self.kp = [v.alloc() for _ in range(8)]
        for r, p in zip(self.kp[:6], (self.pAre, self.pAim, self.pBre, self.pBim, self.pCre, self.pCim)):
            I(f"global_load_ushort v{r}, v{po}, s[{p}:{p+1}]")
        I(f"global_load_ushort v{self.kp[6]}, v{pd}, s[{self.pLdt}:{self.pLdt+1}]")
        self.tk_kp = I(f"global_load_ushort v{self.kp[7]}, v{pd}, s[{self.pDsk}:{self.pDsk+1}]")
        v.free(po); v.free(pd)

    def gemm1(self):
        LNX_C = self.opt.get('lnx_c', 4); LNF_C = self.opt.get('lnf_c', 6)
        g = self.g; I = self.I; M = self.M; v = self.v; T = self.sT; s = self.s
        L = self.vLane; sV = self.sV; sWf = self.sWf; sWl = self.sWl
        vXa, vWa, sel = self.vXa, self.vWa, self.sel
        A = [[v.alloc(4, 4) for _ in range(2)] for _ in range(2)]
        B = [[v.alloc(4, 4) for _ in range(2)] for _ in range(2)]
        acc = [[v.alloc(16, 4) for _ in range(2)] for _ in range(2)]
        cs = v.alloc(4, 4)

        def read_list(c, st, buf):
            half = (c % 4) // 2; so = (c & 1) * 32768
            def tr(ftl, hf):
                a = A[buf][ftl] + 2 * hf
                return f"ds_read_b64_tr_b16 v[{a}:{a+1}], v{vWa[half][ftl]} offset:{so + (16*st + 4*hf) * 256}"
            def xb(lt):
                b = B[buf][lt]
                return f"ds_read_b128 v[{b}:{b+3}], v{vXa[half][st]} offset:{so + lt * 4096}"
            return [[tr(0, 0), tr(0, 1)], [xb(0), xb(1)], [tr(1, 0), tr(1, 1)], []]
        def mf(gg, buf, ftl, lt, first):
            d = acc[ftl][lt]
            c_ = "0" if first else f"v[{d}:{d+15}]"
            gg.I(f"v_mfma_f32_32x32x16_bf16 v[{d}:{d+15}], v[{A[buf][ftl]}:{A[buf][ftl]+3}], v[{B[buf][lt]}:{B[buf][lt]+3}], {c_}")

        p1a, pst, p1b, p2, p3, ln_free = self.ln_stream()
        vq = deque(p1a)
        dq = deque()
        def queue_dma(items, setter):
            for k, f in enumerate(items):
                def e(f=f, k=k):
                    t = f(g)
                    if k == len(items) - 1: setter(t)
                dq.append(e)
        if 2 not in self.tk_chunk: queue_dma(self.ring_items(2), lambda t: self.tk_chunk.__setitem__(2, t))
        queue_dma(self.ring_items(3), lambda t: self.tk_chunk.__setitem__(3, t))
        self.wvm(self.tk_chunk[0])
        g.barrier()
        self.stamp("chunk0")
        tks = []
        for grp in read_list(0, 0, 0):
            for t in grp: tks.append(g.I(t))
        cur = dict(B0=tks[2], B1=tks[3], A1=tks[5])
        buf = 0
        NB = self.opt.get('bg_per_gap', 3)
        for c in range(8):
            for st in range(4):
                first = (c == 0 and st == 0)
                if (c, st) == (1, 0): self.nonce_issue()
                if (c, st) == (2, 1):
                    assert not vq, len(vq)
                    self.nonce_check()
                    vq.extend(pst); vq.extend(p1b)
                if (c, st) == (3, 0) and 'X' in self.deferred: dq.append(self.poison_s)
                if (c, st) == (5, 2) and 'P' in self.deferred: dq.append(self.kg_params_issue)
                if (c, st) == (6, 2):
                    self.stt = [v.alloc(4, 4), v.alloc(4, 4)]
                    self.vSa = v.alloc()
                    M(f"""
                    v_and_b32 v{self.vSa}, 31, v{L}
                    v_lshlrev_b32 v{self.vSa}, 4, v{self.vSa}
                    s_lshl_b32 s{T[0]}, s{self.sI}, 11
                    s_lshl_b32 s{T[1]}, s{sWl}, 10
                    s_add_u32 s{T[0]}, s{T[0]}, s{T[1]}
                    s_add_u32 s{T[0]}, s{T[0]}, {WS_ST}
                    v_add_u32 v{self.vSa}, s{T[0]}, v{self.vSa}
                    """)
                    I(f"buffer_load_dwordx4 v[{self.stt[0]}:{self.stt[0]+3}], v{self.vSa}, s[{self.rWS}:{self.rWS+3}], 0 offen sc1")
                    self.tk_st = I(f"buffer_load_dwordx4 v[{self.stt[1]}:{self.stt[1]+3}], v{self.vSa}, s[{self.rWS}:{self.rWS+3}], 0 offen offset:512 sc1")
                if st == 3:
                    g.wait_lg(cur['A1'])
                    if c < 7:
                        self.stamp(f"c{c}s3")
                        if c == LNX_C:
                            assert not vq, len(vq)
                            g.wait_lg_all()
                        while (c + 1) not in self.tk_chunk: dq.popleft()()
                        self.wvm(self.tk_chunk[c + 1])
                        if c == LNF_C: self.wvm(self.tk_ln)
                        self.stamp(f"c{c}w")
                        g.barrier()
                        if c == LNX_C: vq.extend(p2); vq.extend(p3)
                        if c == LNF_C: self.set_flag(WS_FLN, self.sLb)
                        if c < 4:
                            queue_dma(self.ring_items(c + 4), lambda t, c=c: self.tk_chunk.__setitem__(c + 4, t))
                        else:
                            queue_dma(self.w2_items(c - 4, (c % 4) * 32768), lambda t, c=c: self.tk_w2.__setitem__(c - 4, t))
                nxt = (c, st + 1) if st < 3 else ((c + 1, 0) if c < 7 else None)
                rl = read_list(nxt[0], nxt[1], buf ^ 1) if nxt else [[], [], [], []]
                order = [(0, 0), (0, 1), (1, 0), (1, 1)]
                need = [cur['B1'], None, cur['A1'], None]
                tk = []
                ndma = 3 if len(dq) > 8 else 2
                for k, (ftl, lt) in enumerate(order):
                    g.wait_lg(need[k])
                    mf(g, buf, ftl, lt, first)
                    for t in rl[k]: tk.append(g.I(t))
                    isd = (k in (0, 2)) or (k == 3 and ndma == 3)
                    if isd and dq: dq.popleft()()
                    for _ in range(NB + (1 if k == 3 else 0) - (1 if isd else 0)):
                        if vq: vq.popleft()(g)
                c_ = "0" if first else f"v[{cs}:{cs+3}]"
                g.I(f"v_mfma_f32_16x16x32_bf16 v[{cs}:{cs+3}], v[{sel}:{sel+3}], v[{A[buf][0]}:{A[buf][0]+3}], {c_}")
                if tk: cur = dict(B0=tk[2], B1=tk[3], A1=tk[5])
                buf ^= 1
        while dq: dq.popleft()()
        while vq: vq.popleft()(g)
        ln_free()
        self.stamp("g1_loop")
        stt = self.stt
        N = self.sNon; P = self.sP
        lp = g.label("L_sp"); dn = g.label("L_sd")
        def stcmp():
            g.I(f"v_cmp_eq_u64 vcc, s[{N}:{N+1}], v[{stt[0]+2}:{stt[0]+3}]")
            g.I(f"v_cmp_eq_u64 s[{P}:{P+1}], s[{N}:{N+1}], v[{stt[1]+2}:{stt[1]+3}]")
            g.I(f"s_and_b64 vcc, vcc, s[{P}:{P+1}]")
            g.I("s_cmp_eq_u64 vcc, exec")
        self.wvm(self.tk_st)
        stcmp()
        g.I(f"s_cbranch_scc1 {dn}")
        g.I(f"s_mov_b32 s{T[1]}, 0")
        g.L(lp)
        g.raw(f"buffer_load_dwordx4 v[{stt[0]}:{stt[0]+3}], v{self.vSa}, s[{self.rWS}:{self.rWS+3}], 0 offen sc1")
        g.raw(f"buffer_load_dwordx4 v[{stt[1]}:{stt[1]+3}], v{self.vSa}, s[{self.rWS}:{self.rWS+3}], 0 offen offset:512 sc1")
        g.I("s_waitcnt vmcnt(0)")
        stcmp()
        g.M(f"""
        s_cbranch_scc1 {dn}
        s_add_u32 s{T[1]}, s{T[1]}, 1
        s_cmp_gt_u32 s{T[1]}, {SPIN}
        s_cbranch_scc1 {dn}
        s_sleep 1
        s_branch {lp}
        """)
        g.L(dn)
        v.free(self.vSa)
        CS = self.CS
        hi = v.alloc(); lo = v.alloc(); ad = v.alloc()
        M(f"""
        s_lshl_b32 s{T[0]}, s{sWf}, 1
        s_add_u32 s{T[0]}, s{T[0]}, s{sWl}
        s_lshl_b32 s{T[0]}, s{T[0]}, 7
        s_add_u32 s{T[0]}, s{T[0]}, {CS}
        v_lshlrev_b32 v{ad}, 2, v{L}
        v_add_u32 v{ad}, s{T[0]}, v{ad}
        s_mov_b64 s[{self.sEx}:{self.sEx+1}], exec
        s_mov_b64 exec, 0xffff
        """)
        for k in range(2):
            M(f"""
            v_cvt_pk_bf16_f32 v{hi}, v{cs+k}, v{cs+k}
            v_and_b32 v{hi}, 0xffff0000, v{hi}
            v_sub_f32 v{lo}, v{cs+k}, v{hi}
            v_cvt_pk_bf16_f32 v{lo}, v{hi}, v{lo}
            ds_write_b32 v{ad}, v{lo} offset:{64*k}
            """)
        I(f"s_mov_b64 exec, s[{self.sEx}:{self.sEx+1}]")
        v.free(hi); v.free(lo); v.free(ad)
        ca = v.alloc()
        M(f"""
        v_and_b32 v{ca}, 31, v{L}
        v_lshlrev_b32 v{ca}, 2, v{ca}
        s_lshl_b32 s{T[0]}, s{sWf}, 8
        s_lshl_b32 s{T[1]}, s{sWl}, 7
        s_add_u32 s{T[0]}, s{T[0]}, s{T[1]}
        s_add_u32 s{T[0]}, s{T[0]}, {CS}
        v_add_u32 v{ca}, s{T[0]}, v{ca}
        """)
        for k in range(1, 4):
            for r in (A[0][0], A[0][1], B[0][0], B[0][1]): I(f"v_mov_b32 v{r+k}, 0")
        g.wait_lg_all()
        g.barrier()
        I(f"ds_read_b32 v{A[0][0]}, v{ca}")
        I(f"v_xor_b32 v{ca}, 128, v{ca}")
        tk = I(f"ds_read_b32 v{A[0][1]}, v{ca}")
        rH = self.rWS
        sHb = s.alloc(); sHb1 = s.alloc()
        M(f"""
        s_lshl_b32 s{T[0]}, s{self.sI}, 2
        s_lshl_b32 s{T[1]}, s{sWl}, 1
        s_add_u32 s{T[0]}, s{T[0]}, s{T[1]}
        s_mul_i32 s{T[0]}, s{T[0]}, 112
        s_lshl_b32 s{T[1]}, s{self.sJ}, 3
        s_add_u32 s{T[0]}, s{T[0]}, s{T[1]}
        s_lshl_b32 s{T[1]}, s{sWf}, 2
        s_add_u32 s{T[0]}, s{T[0]}, s{T[1]}
        s_lshl_b32 s{T[0]}, s{T[0]}, 10
        s_add_u32 s{sHb}, s{T[0]}, {WS_H}
        s_cmp_eq_u32 s{self.sSp}, 0
        s_cselect_b32 s{sHb}, s{sHb}, 0x40000000
        s_lshl_b32 s{T[1]}, s{sWl}, 11
        s_xor_b32 s{T[2]}, s{T[1]}, 2048
        s_add_u32 s{sHb1}, s{sHb}, s{T[2]}
        s_add_u32 s{sHb}, s{sHb}, s{T[1]}
        s_mov_b64 vcc, 0xffffffff
        """)
        g.wait_lg(tk)
        g.barrier()
        for ftl in range(2): I(f"v_cndmask_b32 v{A[0][ftl]}, 0, v{A[0][ftl]}, vcc")
        for lt in range(2): I(f"v_cndmask_b32 v{B[0][lt]}, 0, v{stt[lt]}, vcc")
        for lt in range(2):
            for ftl in range(2): mf(g, 0, ftl, lt, False)
        v.free(ca)
        self.stamp("g1_aug")
        self.w2_bg_issue(3, 98304)
        self.w2_bg_read(0)
        self.w2_bg_issue(4, self.TOP)
        self.w2_bg_read(1); self.w2_bg_read(2)
        rsl = [v.alloc(2, 2), v.alloc(2, 2)]
        for lt in range(2):
            I(f"v_mul_f32 v{rsl[lt]}, {hx(-LOG2E)}, v{stt[lt]+1}")
        e = v.alloc(4, 2); z = v.alloc(4, 2); o = [v.alloc(4, 4), v.alloc(4, 4)]
        nst = 0
        for lt in range(2):
            for ftl in range(2):
                if (lt, ftl) == (1, 0):
                    fa_ = v.alloc()
                    M(f"""
                    v_lshlrev_b32 v{fa_}, 3, v{L}
                    v_add_u32 v{fa_}, {WS_FLN}, v{fa_}
                    """)
                    self.h_ln = self.poll_issue(fa_, n=4, stride=512)
                d = acc[ftl][lt]; R = rsl[lt]
                for pp in range(2):
                    ob = o[nst & 1]
                    for qq in range(2):
                        q = 2 * pp + qq; x = d + 4 * q
                        M(f"""
                        v_pk_mul_f32 v[{e}:{e+1}], v[{x}:{x+1}], v[{R}:{R+1}] op_sel_hi:[1,0]
                        v_pk_mul_f32 v[{e+2}:{e+3}], v[{x+2}:{x+3}], v[{R}:{R+1}] op_sel_hi:[1,0]
                        v_exp_f32 v{e}, v{e}
                        v_exp_f32 v{e+1}, v{e+1}
                        v_exp_f32 v{e+2}, v{e+2}
                        v_exp_f32 v{e+3}, v{e+3}
                        """)
                        self.pump()
                        M(f"""
                        v_pk_add_f32 v[{e}:{e+1}], v[{e}:{e+1}], 1.0 op_sel_hi:[1,0]
                        v_pk_add_f32 v[{e+2}:{e+3}], v[{e+2}:{e+3}], 1.0 op_sel_hi:[1,0]
                        v_rcp_f32 v{e}, v{e}
                        v_rcp_f32 v{e+1}, v{e+1}
                        v_rcp_f32 v{e+2}, v{e+2}
                        v_rcp_f32 v{e+3}, v{e+3}
                        """)
                        self.pump()
                        M(f"""
                        v_pk_mul_f32 v[{z}:{z+1}], v[{x}:{x+1}], v[{e}:{e+1}]
                        v_pk_mul_f32 v[{z+2}:{z+3}], v[{x+2}:{x+3}], v[{e+2}:{e+3}]
                        v_cvt_pk_bf16_f32 v{ob+2*qq}, v{z}, v{z+1}
                        v_cvt_pk_bf16_f32 v{ob+2*qq+1}, v{z+2}, v{z+3}
                        """)
                    I(f"v_permlane32_swap_b32 v{ob}, v{ob+2}")
                    I(f"v_permlane32_swap_b32 v{ob+1}, v{ob+3}")
                    I(f"s_add_u32 s{T[0]}, s{(sHb, sHb1)[ftl]}, {(lt * 112 + pp) * 1024}")
                    self.tk_h = I(f"buffer_store_dwordx4 v[{ob}:{ob+3}], v{self.vL16}, s[{rH}:{rH+3}], s{T[0]} offen sc1")
                    self.pump()
                    nst += 1
        self.drain()
        s.free(sHb); s.free(sHb1)
        for row in vXa + vWa:
            for r in row: v.free(r)
        v.free(sel, 4); v.free(cs, 4)
        for r in self.vXo4 + self.vWo4: v.free(r)
        for bb in A + B:
            for r in bb: v.free(r, 4)
        for row in acc:
            for r in row: v.free(r, 16)
        for r in stt: v.free(r, 4)
        for r in rsl: v.free(r, 2)
        v.free(e, 4); v.free(z, 4); v.free(o[0], 4); v.free(o[1], 4)
        if hasattr(self, 'pf_regs'): v.free(self.pf_regs[0], 4); v.free(self.pf_regs[1])
        if hasattr(self, 'touch_regs'): v.free(self.touch_regs[0]); v.free(self.touch_regs[1])
        self.stamp("g1_epi")
        if self.stop == 'g1':
            g.wait_all(); g.barrier()
            self.set_flag(WS_FH, self.sLb)
            g.wait_all()

    def cmul(self, d, x, z, t):
        self.I(f"v_pk_mul_f32 v[{t}:{t+1}], v[{x}:{x+1}], v[{z}:{z+1}] op_sel_hi:[1,0]")
        self.I(f"v_pk_fma_f32 v[{d}:{d+1}], v[{x}:{x+1}], v[{z}:{z+1}], v[{t}:{t+1}] op_sel:[1,1,0] op_sel_hi:[0,1,1] neg_lo:[1,0,0]")

    def kgen(self):
        g = self.g; I = self.I; M = self.M; v = self.v; T = self.sT; s = self.s
        L = self.vLane; kp = self.kp
        g.wait_lg_all()
        g.barrier()
        self.poll_check(self.h_ln)
        self.uu = [v.alloc(4, 4), v.alloc(4, 4)]
        ga = v.alloc()
        M(f"""
        v_lshlrev_b32 v{ga}, 13, v0
        s_lshl_b32 s{T[0]}, s{self.sD0}, 4
        """)
        I(f"buffer_load_dwordx4 v[{self.uu[0]}:{self.uu[0]+3}], v{ga}, s[{self.rWS}:{self.rWS+3}], s{T[0]} offen sc1")
        self.tk_u = I(f"buffer_load_dwordx4 v[{self.uu[1]}:{self.uu[1]+3}], v{ga}, s[{self.rWS}:{self.rWS+3}], s{T[0]} offen offset:16 sc1")
        v.free(ga)
        self.w2_bg_read(3)
        self.w2_bg_issue(5, 98304, after=3)
        self.w2_bg_read(4)
        self.w2_bg_issue(6, self.TOP, after=4)
        self.wvm(self.tk_kp)
        P = lambda: v.alloc(2, 2)
        dt = v.alloc(); arl = v.alloc(); air = v.alloc(); t0 = v.alloc(); t1 = v.alloc(); t2 = v.alloc()
        W = P(); dB = P(); tt = P(); tt2 = P()
        for r in kp: I(f"v_lshlrev_b32 v{r}, 16, v{r}")
        M(f"""
        v_mul_f32 v{dt}, {hx(LOG2E)}, v{kp[6]}
        v_exp_f32 v{dt}, v{dt}
        v_cvt_pk_bf16_f32 v{dt}, v{dt}, v{dt}
        v_and_b32 v{dt}, 0xffff0000, v{dt}
        v_mul_f32 v{arl}, v{dt}, v{kp[0]}
        v_mul_f32 v{air}, v{dt}, v{kp[1]}
        v_mul_f32 v{arl}, {hx(LOG2E)}, v{arl}
        v_mul_f32 v{air}, {hx(1/(2*math.pi))}, v{air}
        v_mul_f32 v{dB}, v{dt}, v{kp[2]}
        v_mul_f32 v{dB+1}, v{dt}, v{kp[3]}
        v_mov_b32 v{tt2}, v{kp[4]}
        v_mov_b32 v{tt2+1}, v{kp[5]}
        """)
        self.cmul(W, tt2, dB, tt)
        self.vDsk = kp[7]
        def zdirect(z, mult):
            m = "1.0" if mult == 1 else hx(float(mult))
            M(f"""
            v_mul_f32 v{t0}, {m}, v{arl}
            v_mul_f32 v{t1}, {m}, v{air}
            v_exp_f32 v{t0}, v{t0}
            v_fract_f32 v{t1}, v{t1}
            v_cos_f32 v{t2}, v{t1}
            v_sin_f32 v{t1}, v{t1}
            v_mul_f32 v{z}, v{t0}, v{t2}
            v_mul_f32 v{z+1}, v{t0}, v{t1}
            """)
        z1 = P(); z2 = P(); z4 = P(); z8 = P(); z256 = P()
        zdirect(z8, 8); zdirect(z1, 1); zdirect(z256, 256)
        self.cmul(z2, z1, z1, tt); self.cmul(z4, z2, z2, tt)
        wa = [self.kwa0] + [v.alloc() for _ in range(15)]
        for k in range(1, 16): I(f"v_xor_b32 v{wa[k]}, {k << 4}, v{wa[0]}")
        pk = [v.alloc(), v.alloc()]; cnt = [0]
        def put(val, row, isY):
            r = pk[cnt[0] & 1]; cnt[0] += 1
            if isY: I(f"v_cvt_pk_bf16_f32 v{r}, v{val}, -v{val+1}")
            else: I(f"v_cvt_pk_bf16_f32 v{r}, v{val}, v{val+1}")
            I(f"ds_write_b32 v{wa[row & 15]}, v{r} offset:{(self.YOFF if isY else self.XOFF) + row * 512}")
        ya = P(); yb = P(); xa_ = P(); xb_ = P(); xc = P(); tx = P()
        I(f"v_mov_b32 v{ya}, 1.0"); I(f"v_mov_b32 v{ya+1}, 0")
        put(ya, 0, True); put(z8, 1, True)
        ycur = [z8]
        def ystep(j):
            dst = ya if (j & 1) == 0 else yb
            self.cmul(dst, ycur[0], z8, tt); ycur[0] = dst
            put(dst, j, True)
        xw = [lambda: put(W, 0, False)]
        def mk_x(row, src, z, dst):
            def f():
                self.cmul(dst, src, z, tx); put(dst, row, False)
            return f
        prev = W
        for e in range(1, 8):
            dst = xa_ if e & 1 else xb_
            xw.append(mk_x(e, prev, z1, dst)); prev = dst
        c256 = P(); c2 = P()
        xw.append(mk_x(8, W, z256, c256))
        prev = c256
        for e in range(1, 4):
            dst = xa_ if e & 1 else xb_
            xw.append(mk_x(8 + e, prev, z2, dst)); prev = dst
        prev = c256
        for idx, row in enumerate([12, 13, 14, 15, 20, 21, 22]):
            dst = c2 if (idx & 1) == 0 else c256
            xw.append(mk_x(row, prev, z256, dst)); prev = dst
            if idx < 2: xw.append(mk_x(16 + idx, dst, z4, xc))
        xi = 0
        for j in range(2, 32):
            ystep(j)
            if xi < len(xw): xw[xi](); xi += 1
            self.pump()
        while xi < len(xw): xw[xi](); xi += 1
        self.drain()
        for r in (z1, z2, z4, z8, z256, ya, yb, xa_, xb_, xc, tx, c256, c2, W, dB, tt, tt2): v.free(r, 2)
        for r in wa + pk + [dt, arl, air] + kp[:7]: v.free(r)
        R = [self.kR0] + [v.alloc() for _ in range(3)]; RX = [v.alloc() for _ in range(4)]
        for k in range(1, 4): I(f"v_xor_b32 v{R[k]}, {64*k}, v{R[0]}")
        I(f"s_lshl_b32 s{T[1]}, s{self.sHh}, 13")
        for k in range(4): I(f"v_add_u32 v{RX[k]}, s{T[1]}, v{R[k]}")
        vb = self.kvb; vs = self.kvs; gi = v.alloc()
        g.wait_lg_all()
        g.barrier()
        self.stamp("kg_gen")
        fa = [v.alloc(4, 4) for _ in range(8)]; fb = [[v.alloc(4, 4) for _ in range(8)] for _ in range(2)]
        kacc = [v.alloc(4, 4), v.alloc(4, 4)]
        tks = []
        def kmf(sd):
            g.wait_lg(tks[sd])
            for ct in range(2):
                c_ = "0" if sd == 0 else f"v[{kacc[ct]}:{kacc[ct]+3}]"
                I(f"v_mfma_f32_16x16x32_bf16 v[{kacc[ct]}:{kacc[ct]+3}], v[{fa[sd]}:{fa[sd]+3}], v[{fb[ct][sd]}:{fb[ct][sd]+3}], {c_}")
        for st in range(8):
            I(f"ds_read_b128 v[{fa[st]}:{fa[st]+3}], v{RX[st & 3]} offset:{self.XOFF + (st >> 2) * 256}")
            I(f"ds_read_b128 v[{fb[0][st]}:{fb[0][st]+3}], v{R[st & 3]} offset:{self.YOFF + (st >> 2) * 256}")
            tks.append(I(f"ds_read_b128 v[{fb[1][st]}:{fb[1][st]+3}], v{R[st & 3]} offset:{self.YOFF + 8192 + (st >> 2) * 256}"))
            if st >= 3: kmf(st - 3); self.pump()
        for sd in range(5, 8): kmf(sd); self.pump()
        for r in fa + fb[0] + fb[1]: v.free(r, 4)
        for r in R + RX: v.free(r)
        g.barrier()
        M(f"""
        s_mov_b64 s[{self.sEx}:{self.sEx+1}], exec
        s_cmp_eq_u32 s{self.sHh}, 0
        s_cselect_b64 exec, -1, 0xffffffff
        """)
        tp = [t0, t1, t2, gi]
        for r in range(4):
            for ct in range(2):
                tr_ = tp[(2 * r + ct) & 3]
                I(f"v_cvt_pk_bf16_f32 v{tr_}, v{kacc[ct]+r}, v{kacc[ct]+r}")
                I(f"ds_write_b16 v{vb}, v{tr_} offset:{ct*256}")
            if r < 3: I(f"v_add_u32 v{vb}, v{vb}, v{vs}")
        M(f"""
        s_mov_b64 exec, 1
        s_mul_i32 s{T[0]}, s{self.sCh}, {self.TABCH}
        s_add_u32 s{T[0]}, s{T[0]}, {self.TAB}
        v_mov_b32 v{t0}, s{T[0]}
        v_mov_b32 v{t1}, 0
        ds_write_b16 v{t0}, v{t1}
        s_mov_b64 exec, s[{self.sEx}:{self.sEx+1}]
        """)
        v.free(kacc[0], 4); v.free(kacc[1], 4); v.free(vb); v.free(vs); v.free(gi)
        wa_ = v.alloc(); z = v.alloc(4, 4)
        M(f"""
        v_lshlrev_b32 v{wa_}, 4, v0
        v_add_u32 v{wa_}, {self.U + 512}, v{wa_}
        """)
        self.wvm(self.tk_u)
        I(f"ds_write_b128 v{wa_}, v[{self.uu[0]}:{self.uu[0]+3}]")
        I(f"ds_write_b128 v{wa_}, v[{self.uu[1]}:{self.uu[1]+3}] offset:{self.UCH}")
        M(f"""
        s_mul_i32 s{T[0]}, s{self.sCh}, {self.UCH}
        s_lshl_b32 s{T[1]}, s{self.sHh}, 8
        s_add_u32 s{T[0]}, s{T[0]}, s{T[1]}
        s_add_u32 s{T[0]}, s{T[0]}, {self.U}
        v_lshlrev_b32 v{wa_}, 2, v{L}
        v_add_u32 v{wa_}, s{T[0]}, v{wa_}
        v_mov_b32 v{z}, 0
        ds_write_b32 v{wa_}, v{z}
        """)
        v.free(wa_); v.free(z, 4); v.free(self.uu[0], 4); v.free(self.uu[1], 4)
        self.drain()
        self.wvm(self.tk_h)
        g.wait_lg_all()
        g.barrier()
        self.set_flag(WS_FH, self.sLb)
        self.stamp("kg_tab")
        wa0 = v.alloc()
        I(f"v_lshlrev_b32 v{wa0}, 4, v0")
        xa = self.xa
        E = [v.alloc(12), v.alloc(12)]; Dd = [v.alloc(8, 2), v.alloc(8, 2)]; O = [v.alloc(8, 2), v.alloc(8, 2)]
        tkc = []
        for ch in range(2):
            for k in range(1, 12): tk = I(f"ds_read_u16 v{E[ch] + k}, v{xa[k]} offset:{ch * self.TABCH}")
            tkc.append(tk)
        d = v.alloc(8, 2); o = v.alloc(8, 2); tw = self.ktw; e4 = v.alloc(4)
        for idx in range(4): tkt = I(f"ds_read_u16 v{e4+idx}, v{self.kta[idx]}")
        for ch in range(2):
            g.wait_lg(tkc[ch])
            e = E[ch]; dd = Dd[ch]
            I(f"v_lshlrev_b32 v{dd}, 16, v{e+1}")
            for m in range(1, 6): I(f"v_lshl_or_b32 v{dd+m}, v{e+2*m+1}, 16, v{e+2*m}")
            self.kr_write(dd, O[ch], wa0, ch * self.KRCH)
        for k in range(3, 8): I(f"v_mov_b32 v{d+k}, 0")
        g.wait_lg(tkt)
        M(f"""
        v_lshlrev_b32 v{d}, 16, v{e4}
        v_lshl_or_b32 v{d+1}, v{e4+2}, 16, v{e4+1}
        v_mov_b32 v{d+2}, v{e4+3}
        s_mov_b64 s[{self.sEx}:{self.sEx+1}], exec
        s_mov_b64 exec, 0x3f
        """)
        self.kr_write(d, o, tw, 0)
        I(f"s_mov_b64 exec, s[{self.sEx}:{self.sEx+1}]")
        for r, n in ((E[0], 12), (E[1], 12), (Dd[0], 8), (Dd[1], 8), (O[0], 8), (O[1], 8), (d, 8), (o, 8), (e4, 4)): v.free(r, n)
        for r in xa + self.kta + [tw, wa0, t0, t1, t2]: v.free(r)

    def kr_write(self, d, o, wa, off):
        I = self.I
        I(f"ds_write_b128 v{wa}, v[{d+2}:{d+5}] offset:{off}")
        for m in range(4): I(f"v_alignbit_b32 v{o+m}, v{d+2+m}, v{d+1+m}, 16")
        I(f"ds_write_b128 v{wa}, v[{o}:{o+3}] offset:{off + self.KRP}")
        for m in range(4): I(f"v_alignbit_b32 v{o+4+m}, v{d+1+m}, v{d+m}, 16")
        I(f"ds_write_b128 v{wa}, v[{o+4}:{o+7}] offset:{off + 3 * self.KRP}")
        for m in range(4): I(f"v_mov_b32 v{o+m}, v{d+1+m}")
        I(f"ds_write_b128 v{wa}, v[{o}:{o+3}] offset:{off + 2 * self.KRP}")

    def conv(self):
        g = self.g; I = self.I; M = self.M; v = self.v; T = self.sT; s = self.s; L = self.vLane
        vKA = self.vKA; vUB = self.vUB; t0 = v.alloc(); t1 = v.alloc(); t2 = self.vSo
        g.wait_lg_all()
        g.barrier()
        self.stamp("kg_done")
        for r in self.vW2o4: v.free(r)
        FA = [[v.alloc(4, 4) for _ in range(8)] for _ in range(2)]
        FB = [[v.alloc(4, 4) for _ in range(8)] for _ in range(2)]
        acc = [v.alloc(4, 4) for _ in range(8)]
        def rd(u, k, buf):
            a = FA[buf][k]; b = FB[buf][k]
            return [f"ds_read_b64 v[{a}:{a+1}], v{vKA} offset:{64 * (59 - 8 * k - u)}",
                    f"ds_read_b64 v[{a+2}:{a+3}], v{vKA} offset:{64 * (59 - 8 * k - u) + 8}",
                    f"ds_read_b128 v[{b}:{b+3}], v{vUB} offset:{64 * (8 * k + 3 - u)}"]
        self.w2_bg_read(5); self.w2_bg_read(6)
        tk0 = []
        for k in range(8):
            for t in rd(0, k, 0): tk = I(t)
            tk0.append(tk)
        for u in range(4):
            buf = u & 1
            pend = deque()
            if u < 3:
                for k in range(8): pend.extend(rd(u + 1, k, buf ^ 1))
            else:
                for r in FA[0] + FB[0]: v.free(r, 4)
                self.g2_prepare()
            ntk = []
            nm = 0
            for tau in range(8):
                g.wait_lg(tk0[tau])
                for k in range(tau + 1):
                    first = (u == 0 and k == 0)
                    d = acc[tau]
                    c_ = "0" if first else f"v[{d}:{d+3}]"
                    I(f"v_mfma_f32_16x16x32_bf16 v[{d}:{d+3}], v[{FA[buf][k]}:{FA[buf][k]+3}], v[{FB[buf][tau-k]}:{FB[buf][tau-k]+3}], {c_}")
                    nm += 1
                    if pend:
                        t = I(pend.popleft())
                        if len(pend) % 3 == 0: ntk.append(t)
                    elif nm % 2 == 0: self.pump()
            if u == 1: self.g2_poll_issue()
            tk0 = ntk
        for r in FA[1] + FB[1]: v.free(r, 4)
        self.stamp("conv_mfma")
        lab = g.label("L_sw")
        g.I(f"s_cmp_eq_u32 s{self.sHh}, 0")
        g.I(f"s_cbranch_scc1 {lab}")
        for k in range(4):
            for r in range(4): g.I(f"v_swap_b32 v{acc[k]+r}, v{acc[k+4]+r}")
        g.L(lab)
        ea = v.alloc(); eb = v.alloc()
        M(f"""
        s_lshl_b32 s{T[0]}, s{self.sV}, 12
        s_add_u32 s{T[0]}, s{T[0]}, {self.EX}
        v_add_u32 v{ea}, s{T[0]}, v{self.vL16}
        """)
        for k in range(4): I(f"ds_write_b128 v{ea}, v[{acc[4+k]}:{acc[4+k]+3}] offset:{k*1024}")
        M(f"""
        s_xor_b32 s{T[0]}, s{self.sV}, 1
        s_lshl_b32 s{T[0]}, s{T[0]}, 12
        s_add_u32 s{T[0]}, s{T[0]}, {self.EX}
        v_add_u32 v{eb}, s{T[0]}, v{self.vL16}
        """)
        ua = v.alloc(); uv = [v.alloc(2, 2) for _ in range(4)]
        M(f"""
        s_mul_i32 s{T[0]}, s{self.sCh}, {self.UCH}
        s_lshl_b32 s{T[1]}, s{self.sHh}, 11
        s_add_u32 s{T[0]}, s{T[0]}, s{T[1]}
        s_add_u32 s{T[0]}, s{T[0]}, {self.U + 512}
        v_add_u32 v{ua}, s{T[0]}, v{t2}
        """)
        for k in range(4): I(f"ds_read_b64 v[{uv[k]}:{uv[k]+1}], v{ua} offset:{k*512}")
        self.pump(4)
        g.wait_lg_all()
        g.barrier()
        pr = [v.alloc(4, 4) for _ in range(4)]
        for k in range(4): tk = I(f"ds_read_b128 v[{pr[k]}:{pr[k]+3}], v{eb} offset:{k*1024}")
        sS = self.s2.alloc()
        M(f"""
        s_lshl_b32 s{sS}, s{self.sD}, 12
        s_lshl_b32 s{T[1]}, s{self.sHh}, 11
        s_add_u32 s{sS}, s{sS}, s{T[1]}
        s_add_u32 s{sS}, s{sS}, {WS_S}
        """)
        self.pump(4)
        g.wait_lg(tk)
        x4 = v.alloc(4); so = [v.alloc(2, 2), v.alloc(2, 2)]
        D = self.vDsk
        for k in range(4):
            y = acc[k]; p = pr[k]; o = so[k & 1]
            M(f"""
            v_add_f32 v{y}, v{y}, v{p}
            v_add_f32 v{y+1}, v{y+1}, v{p+1}
            v_add_f32 v{y+2}, v{y+2}, v{p+2}
            v_add_f32 v{y+3}, v{y+3}, v{p+3}
            v_lshlrev_b32 v{x4}, 16, v{uv[k]}
            v_and_b32 v{x4+1}, 0xffff0000, v{uv[k]}
            v_lshlrev_b32 v{x4+2}, 16, v{uv[k]+1}
            v_and_b32 v{x4+3}, 0xffff0000, v{uv[k]+1}
            v_fmac_f32 v{y}, v{x4}, v{D}
            v_fmac_f32 v{y+1}, v{x4+1}, v{D}
            v_fmac_f32 v{y+2}, v{x4+2}, v{D}
            v_fmac_f32 v{y+3}, v{x4+3}, v{D}
            v_cvt_pk_bf16_f32 v{o}, v{y}, v{y+1}
            v_cvt_pk_bf16_f32 v{o+1}, v{y+2}, v{y+3}
            v_min_u32 v{o}, -2, v{o}
            v_min_u32 v{o+1}, -2, v{o+1}
            """)
            self.tk_s = I(f"buffer_store_dwordx2 v[{o}:{o+1}], v{t2}, s[{self.rWS}:{self.rWS+3}], s{sS} offen offset:{k*512} sc1")
            self.pump(2)
        self.drain()
        for r in acc + pr: v.free(r, 4)
        for r in uv + so: v.free(r, 2)
        v.free(x4, 4)
        for r in (vKA, vUB, t0, t1, t2, ea, eb, ua, D): v.free(r)
        self.stamp("conv_done")
        if self.stop == 'cv':
            g.wait_all(); g.barrier()

    def g2_poll_issue(self):
        M = self.M; v = self.v; T = self.sT; L = self.vLane
        fa = v.alloc()
        M(f"""
        v_and_b32 v{fa}, 15, v{L}
        v_lshlrev_b32 v{fa}, 3, v{fa}
        s_lshr_b32 s{T[0]}, s{self.sM}, 1
        s_lshl_b32 s{T[0]}, s{T[0]}, 7
        s_add_u32 s{T[0]}, s{T[0]}, {WS_FH}
        v_add_u32 v{fa}, s{T[0]}, v{fa}
        """)
        self.h_h = self.poll_issue(fa)

    def g2_prepare(self):
        g = self.g; I = self.I; M = self.M; v = self.v; T = self.sT; s2 = self.s2; L = self.vLane; sV = self.sV
        self.drain()
        self.poll_check(self.h_h)
        self.D2 = D = 14
        self.hb = hb = [[v.alloc(4, 4) for _ in range(2)] for _ in range(D)]
        self.sHs = sHs = [s2.alloc(), s2.alloc()]
        self.sHg = s2.alloc(); self.sHc = [s2.alloc(), s2.alloc()]
        M(f"""
        s_lshl_b32 s{T[0]}, s{self.sM}, 1
        s_and_b32 s{T[1]}, s{sV}, 1
        s_add_u32 s{T[2]}, s{T[0]}, s{T[1]}
        s_xor_b32 s{T[1]}, s{T[1]}, 1
        s_add_u32 s{T[3]}, s{T[0]}, s{T[1]}
        s_mul_i32 s{T[2]}, s{T[2]}, 112
        s_mul_i32 s{T[3]}, s{T[3]}, 112
        s_mul_i32 s{T[0]}, s{sV}, 28
        s_add_u32 s{T[2]}, s{T[2]}, s{T[0]}
        s_add_u32 s{T[3]}, s{T[3]}, s{T[0]}
        s_lshl_b32 s{T[2]}, s{T[2]}, 10
        s_lshl_b32 s{T[3]}, s{T[3]}, 10
        s_add_u32 s{sHs[0]}, s{T[2]}, {WS_H}
        s_add_u32 s{sHs[1]}, s{T[3]}, {WS_H}
        """)
        self.tkh = {}
        for st in range(D):
            for ls in range(2):
                self.bg.append(lambda st=st, ls=ls: self.hload(st, ls))
        self.xt = xt = [v.alloc(4, 4), v.alloc(4, 4)]; self.vo = vo = v.alloc(); self.vo2 = vo2 = v.alloc()
        self.sXo = sXo = s2.alloc()
        tmp = v.alloc()
        def xl():
            M(f"""
            v_lshrrev_b32 v{vo}, 3, v{L}
            v_lshlrev_b32 v{vo2}, 12, v{vo}
            v_lshlrev_b32 v{vo}, 10, v{vo}
            v_and_b32 v{tmp}, 7, v{L}
            v_lshlrev_b32 v{tmp}, 4, v{tmp}
            v_add_u32 v{vo}, v{vo}, v{tmp}
            v_add_u32 v{vo2}, v{vo2}, v{tmp}
            s_lshl_b32 s{sXo}, s{self.sM}, 16
            s_lshl_b32 s{self.sB[0]}, s{sV}, 14
            s_add_u32 s{sXo}, s{sXo}, s{self.sB[0]}
            s_lshl_b32 s{self.sB[0]}, s{self.sN}, 7
            s_add_u32 s{sXo}, s{sXo}, s{self.sB[0]}
            s_add_u32 s{self.sB[0]}, s{sXo}, 8192
            """)
            I(f"buffer_load_dwordx4 v[{xt[0]}:{xt[0]+3}], v{vo}, s[{self.rX}:{self.rX+3}], s{sXo} offen")
            self.tk_x = I(f"buffer_load_dwordx4 v[{xt[1]}:{xt[1]+3}], v{vo}, s[{self.rX}:{self.rX+3}], s{self.sB[0]} offen")
            v.free(tmp)
        self.bg.append(xl)

    def hload(self, st, ls):
        r = self.hb[st % self.D2][ls]
        G_, C = self.sHg, self.sHc
        if st % 4 == 0 and ls == 0:
            if st == 0: self.I(f"s_mov_b32 s{G_}, s{self.sRot2}")
            else:
                self.I(f"s_add_u32 s{G_}, s{G_}, 1")
                self.I(f"s_cmp_eq_u32 s{G_}, 7")
                self.I(f"s_cselect_b32 s{G_}, 0, s{G_}")
            self.I(f"s_lshl_b32 s{C[0]}, s{G_}, 12")
            self.I(f"s_add_u32 s{C[1]}, s{C[0]}, s{self.sHs[1]}")
            self.I(f"s_add_u32 s{C[0]}, s{C[0]}, s{self.sHs[0]}")
        self.tkh[(st, ls)] = self.I(f"buffer_load_dwordx4 v[{r}:{r+3}], v{self.vL16}, s[{self.rWS}:{self.rWS+3}], s{C[ls]} offen offset:{(st % 4) * 1024} sc1")

    def gemm2(self):
        g = self.g; I = self.I; M = self.M; v = self.v; T = self.sT; s = self.s; L = self.vLane
        RED = 0; XT = 49152; ST_ = 57344
        sV = self.sV; D = self.D2; hb = self.hb; tkh = self.tkh
        xt, vo, vo2, sXo = self.xt, self.vo, self.vo2, self.sXo
        self.rOut = self.s2.alloc(4, 4)
        acc = [v.alloc(16, 4) for _ in range(4)]
        xw = [v.alloc(), v.alloc()]; t0 = v.alloc(); t1 = v.alloc(); sw = v.alloc(); ra = v.alloc(); rw = [v.alloc() for _ in range(3)]
        sa = v.alloc(); xq = [v.alloc() for _ in range(4)]; rsv = v.alloc(4, 4); rsa = v.alloc()
        B = self.sB
        vq = deque()
        def add(text):
            for ln in text.strip().split('\n'):
                ln = ln.strip()
                if ln: vq.append(ln)
        p = self.pOut; r = self.rOut
        add(f"""
        s_mov_b32 s{r}, s{p}
        s_and_b32 s{r+1}, s{p+1}, 0xffff
        s_mov_b32 s{r+2}, {2 << 20}
        s_mov_b32 s{r+3}, 0x20000
        v_lshrrev_b32 v{t0}, 3, v{L}
        v_lshlrev_b32 v{t0}, 7, v{t0}
        v_lshrrev_b32 v{t1}, 4, v{L}
        v_and_b32 v{xw[1]}, 7, v{L}
        v_xor_b32 v{t1}, v{t1}, v{xw[1]}
        v_lshlrev_b32 v{t1}, 4, v{t1}
        s_lshl_b32 s{B[0]}, s{sV}, 11
        s_add_u32 s{B[0]}, s{B[0]}, {XT}
        v_add3_u32 v{xw[0]}, v{t0}, v{t1}, s{B[0]}
        v_xor_b32 v{xw[1]}, 64, v{xw[0]}
        v_add_u32 v{xw[1]}, 1024, v{xw[1]}
        v_lshrrev_b32 v{t1}, 4, v{L}
        v_and_b32 v{t1}, 1, v{t1}
        v_lshlrev_b32 v{t1}, 2, v{t1}
        v_and_b32 v{sw}, 7, v{L}
        v_xor_b32 v{t1}, v{t1}, v{sw}
        v_lshlrev_b32 v{t1}, 4, v{t1}
        s_lshl_b32 s{B[0]}, s{sV}, 11
        s_add_u32 s{B[0]}, s{B[0]}, {ST_}
        v_add3_u32 v{sw}, v{t0}, v{t1}, s{B[0]}
        v_and_b32 v{rsa}, 31, v{L}
        v_lshlrev_b32 v{rsa}, 4, v{rsa}
        s_lshl_b32 s{B[0]}, s{self.sM}, 10
        s_and_b32 s{B[1]}, s{sV}, 1
        s_lshl_b32 s{B[1]}, s{B[1]}, 9
        s_add_u32 s{B[0]}, s{B[0]}, s{B[1]}
        s_add_u32 s{B[0]}, s{B[0]}, {WS_ST}
        v_add_u32 v{rsa}, s{B[0]}, v{rsa}
        """)
        vq2 = deque()
        def add2(text):
            for ln in text.strip().split('\n'):
                ln = ln.strip()
                if ln: vq2.append(ln)
        for k in range(1, 4):
            add2(f"""
            s_xor_b32 s{B[0]}, s{sV}, {k}
            s_mul_i32 s{B[0]}, s{B[0]}, 12288
            s_add_u32 s{B[0]}, s{B[0]}, {RED + (k - 1) * 4096}
            v_add_u32 v{rw[k-1]}, s{B[0]}, v{self.vL16}
            """)
        add2(f"""
        v_lshrrev_b32 v{t0}, 5, v{L}
        v_lshlrev_b32 v{t0}, 2, v{t0}
        v_lshrrev_b32 v{t1}, 2, v{L}
        v_and_b32 v{t1}, 3, v{t1}
        v_add_u32 v{t0}, v{t0}, v{t1}
        v_lshlrev_b32 v{sa}, 7, v{t0}
        v_lshrrev_b32 v{t1}, 1, v{t1}
        s_and_b32 s{B[0]}, s{sV}, 1
        v_xor_b32 v{t1}, s{B[0]}, v{t1}
        v_lshlrev_b32 v{t1}, 6, v{t1}
        v_add_u32 v{sa}, v{sa}, v{t1}
        v_lshrrev_b32 v{t1}, 4, v{L}
        v_and_b32 v{t1}, 1, v{t1}
        v_lshlrev_b32 v{t1}, 5, v{t1}
        v_add_u32 v{sa}, v{sa}, v{t1}
        v_and_b32 v{t1}, 3, v{L}
        v_lshlrev_b32 v{t1}, 3, v{t1}
        v_add_u32 v{sa}, v{sa}, v{t1}
        s_lshr_b32 s{B[1]}, s{sV}, 1
        s_lshl_b32 s{B[1]}, s{B[1]}, 12
        s_add_u32 s{B[1]}, s{B[1]}, {ST_}
        v_add_u32 v{sa}, s{B[1]}, v{sa}
        v_and_b32 v{t0}, 31, v{L}
        v_lshrrev_b32 v{t1}, 1, v{t0}
        v_and_b32 v{t1}, 7, v{t1}
        s_lshr_b32 s{B[1]}, s{sV}, 1
        s_lshl_b32 s{B[1]}, s{B[1]}, 2
        v_xor_b32 v{t1}, s{B[1]}, v{t1}
        v_lshlrev_b32 v{t1}, 4, v{t1}
        v_lshlrev_b32 v{t0}, 7, v{t0}
        v_add_u32 v{xq[0]}, v{t0}, v{t1}
        v_lshrrev_b32 v{t0}, 5, v{L}
        v_lshlrev_b32 v{t0}, 3, v{t0}
        v_add_u32 v{xq[0]}, v{xq[0]}, v{t0}
        s_and_b32 s{B[0]}, s{sV}, 1
        s_lshl_b32 s{B[0]}, s{B[0]}, 12
        s_add_u32 s{B[0]}, s{B[0]}, {XT}
        v_add_u32 v{xq[0]}, s{B[0]}, v{xq[0]}
        v_xor_b32 v{xq[1]}, 16, v{xq[0]}
        v_xor_b32 v{xq[2]}, 32, v{xq[0]}
        v_xor_b32 v{xq[3]}, 48, v{xq[0]}
        s_mul_i32 s{B[0]}, s{sV}, 12288
        s_add_u32 s{B[0]}, s{B[0]}, {RED}
        v_add_u32 v{ra}, s{B[0]}, v{self.vL16}
        """)
        sSt = [self.s2.alloc(), self.s2.alloc()]
        add2(f"""
        s_lshl_b32 s{sSt[0]}, s{self.sN}, 18
        s_lshl_b32 s{B[0]}, s{sV}, 16
        s_add_u32 s{sSt[0]}, s{sSt[0]}, s{B[0]}
        s_lshl_b32 s{B[0]}, s{self.sM}, 7
        s_add_u32 s{sSt[0]}, s{sSt[0]}, s{B[0]}
        s_add_u32 s{sSt[0]}, s{sSt[0]}, {WS_S}
        s_add_u32 s{sSt[1]}, s{sSt[0]}, 32768
        """)
        g.wait_lg_all()
        g.barrier()
        self.stamp("g2_start")
        XST = self.opt.get('x_step', 9); SLD = self.opt.get('sld_step', 20)
        def sload():
            I(f"buffer_load_dwordx4 v[{xt[0]}:{xt[0]+3}], v{vo2}, s[{self.rWS}:{self.rWS+3}], s{sSt[0]} offen sc1")
            return I(f"buffer_load_dwordx4 v[{xt[1]}:{xt[1]+3}], v{vo2}, s[{self.rWS}:{self.rWS+3}], s{sSt[1]} offen sc1")
        for st in range(28):
            self.wvm(tkh[(st, 1)])
            k = 0
            for ls in range(2):
                for ds_ in range(2):
                    d = acc[2 * ds_ + ls]; a = self.aW2 + st * 8 + ds_ * 4; b = hb[st % D][ls]
                    c_ = "0" if st == 0 else f"v[{d}:{d+15}]"
                    I(f"v_mfma_f32_32x32x16_bf16 v[{d}:{d+15}], a[{a}:{a+3}], v[{b}:{b+3}], {c_}")
                    k += 1
                    if st + D < 28 and ds_ == 1: self.hload(st + D, ls)
                    q_ = vq if vq else vq2
                    for _ in range(3):
                        if q_: I(q_.popleft())
            if st == XST:
                assert not vq
                self.wvm(self.tk_x)
                for e in range(2): I(f"ds_write_b128 v{xw[e]}, v[{xt[e]}:{xt[e]+3}]")
                tk_rs = I(f"buffer_load_dwordx4 v[{rsv}:{rsv+3}], v{rsa}, s[{self.rWS}:{self.rWS+3}], 0 offen sc1")
            if st == SLD:
                assert not vq2
                g.wait_lg_all()
                tk_st = sload()
        self.stamp("g2_loop")
        if self.opt.get('dump_acc'):
            la = v.alloc()
            I(f"v_lshlrev_b32 v{la}, 2, v{L}")
            I(f"s_lshl_b32 s{T[0]}, s2, 2"); I(f"s_add_u32 s{T[0]}, s{T[0]}, s{sV}"); I(f"s_lshl_b32 s{T[0]}, s{T[0]}, 14")
            I(f"s_add_u32 s{T[0]}, s{T[0]}, {32 << 20}")
            for k in range(4):
                for r_ in range(16):
                    I(f"buffer_store_dword v{acc[k]+r_}, v{la}, s[{self.rWS}:{self.rWS+3}], s{T[0]} offen offset:{(k*16 + r_)*256 % 4096}")
                    if (k * 16 + r_) % 16 == 15: I(f"s_add_u32 s{T[0]}, s{T[0]}, 4096")
                    if r_ % 8 == 7: g.wait_vm_all()
            v.free(la)
        for k in range(1, 4):
            for q in range(4): I(f"ds_write_b128 v{rw[k-1]}, v[{acc[k]+4*q}:{acc[k]+4*q+3}] offset:{q*1024}")
        lp = g.label("L_sq"); dn = g.label("L_sr")
        P = self.sP
        def scmp():
            g.I(f"v_cmp_eq_u32 vcc, -1, v{xt[0]}")
            for rr in (xt[0] + 1, xt[0] + 2, xt[0] + 3, xt[1], xt[1] + 1, xt[1] + 2, xt[1] + 3):
                g.I(f"v_cmp_eq_u32 s[{P}:{P+1}], -1, v{rr}")
                g.I(f"s_or_b64 vcc, vcc, s[{P}:{P+1}]")
            g.I("s_cmp_eq_u64 vcc, 0")
        self.wvm(tk_st)
        scmp()
        g.I(f"s_cbranch_scc1 {dn}")
        g.I(f"s_mov_b32 s{T[1]}, 0")
        g.L(lp)
        g.raw(f"buffer_load_dwordx4 v[{xt[0]}:{xt[0]+3}], v{vo2}, s[{self.rWS}:{self.rWS+3}], s{sSt[0]} offen sc1")
        g.raw(f"buffer_load_dwordx4 v[{xt[1]}:{xt[1]+3}], v{vo2}, s[{self.rWS}:{self.rWS+3}], s{sSt[1]} offen sc1")
        g.I("s_waitcnt vmcnt(0)")
        scmp()
        g.M(f"""
        s_cbranch_scc1 {dn}
        s_add_u32 s{T[1]}, s{T[1]}, 1
        s_cmp_gt_u32 s{T[1]}, {SPIN}
        s_cbranch_scc1 {dn}
        s_branch {lp}
        """)
        g.L(dn)
        I(f"ds_write_b128 v{sw}, v[{xt[0]}:{xt[0]+3}]")
        I(f"ds_write_b128 v{sw}, v[{xt[1]}:{xt[1]+3}] offset:1024")
        sv = [v.alloc(2, 2) for _ in range(4)]; xv = [v.alloc(2, 2) for _ in range(4)]
        cL = self.sP2
        rs2 = v.alloc(2, 2)
        self.wvm(tk_rs)
        I(f"v_mov_b32 v{rs2}, v{rsv+1}")
        g.wait_lg_all()
        g.barrier()
        self.stamp("red")
        M(f"""
        s_mov_b32 s{cL}, {hx(-LOG2E)}
        s_mov_b32 s{cL+1}, {hx(-LOG2E)}
        """)
        pr = [acc[1], acc[2], acc[3]]
        tq = []
        for q in range(4):
            for k in range(3): I(f"ds_read_b128 v[{pr[k]+4*q}:{pr[k]+4*q+3}], v{ra} offset:{k*4096 + q*1024}")
            I(f"ds_read_b64_tr_b16 v[{sv[q]}:{sv[q]+1}], v{sa} offset:{q*1024}")
            tq.append(I(f"ds_read_b64 v[{xv[q]}:{xv[q]+1}], v{xq[q]}"))
        o = acc[0]
        e = v.alloc(4, 2); u4 = v.alloc(4, 2); x4 = v.alloc(4, 2); ob = [v.alloc(2, 2), v.alloc(2, 2)]
        for q in range(4):
            z = o + 4 * q
            g.wait_lg(tq[q])
            for k in range(3):
                I(f"v_pk_add_f32 v[{z}:{z+1}], v[{z}:{z+1}], v[{pr[k]+4*q}:{pr[k]+4*q+1}]")
                I(f"v_pk_add_f32 v[{z+2}:{z+3}], v[{z+2}:{z+3}], v[{pr[k]+4*q+2}:{pr[k]+4*q+3}]")
            M(f"""
            v_pk_mul_f32 v[{z}:{z+1}], v[{z}:{z+1}], v[{rs2}:{rs2+1}] op_sel_hi:[1,0]
            v_pk_mul_f32 v[{z+2}:{z+3}], v[{z+2}:{z+3}], v[{rs2}:{rs2+1}] op_sel_hi:[1,0]
            v_pk_mul_f32 v[{e}:{e+1}], v[{z}:{z+1}], s[{cL}:{cL+1}]
            v_pk_mul_f32 v[{e+2}:{e+3}], v[{z+2}:{z+3}], s[{cL}:{cL+1}]
            v_exp_f32 v{e}, v{e}
            v_exp_f32 v{e+1}, v{e+1}
            v_exp_f32 v{e+2}, v{e+2}
            v_exp_f32 v{e+3}, v{e+3}
            v_lshlrev_b32 v{u4}, 16, v{sv[q]}
            v_and_b32 v{u4+1}, 0xffff0000, v{sv[q]}
            v_lshlrev_b32 v{u4+2}, 16, v{sv[q]+1}
            v_and_b32 v{u4+3}, 0xffff0000, v{sv[q]+1}
            v_pk_add_f32 v[{e}:{e+1}], v[{e}:{e+1}], 1.0 op_sel_hi:[1,0]
            v_pk_add_f32 v[{e+2}:{e+3}], v[{e+2}:{e+3}], 1.0 op_sel_hi:[1,0]
            v_rcp_f32 v{e}, v{e}
            v_rcp_f32 v{e+1}, v{e+1}
            v_rcp_f32 v{e+2}, v{e+2}
            v_rcp_f32 v{e+3}, v{e+3}
            v_lshlrev_b32 v{x4}, 16, v{xv[q]}
            v_and_b32 v{x4+1}, 0xffff0000, v{xv[q]}
            v_lshlrev_b32 v{x4+2}, 16, v{xv[q]+1}
            v_and_b32 v{x4+3}, 0xffff0000, v{xv[q]+1}
            v_pk_mul_f32 v[{z}:{z+1}], v[{z}:{z+1}], v[{e}:{e+1}]
            v_pk_mul_f32 v[{z+2}:{z+3}], v[{z+2}:{z+3}], v[{e+2}:{e+3}]
            v_pk_fma_f32 v[{z}:{z+1}], v[{z}:{z+1}], v[{u4}:{u4+1}], v[{x4}:{x4+1}]
            v_pk_fma_f32 v[{z+2}:{z+3}], v[{z+2}:{z+3}], v[{u4+2}:{u4+3}], v[{x4+2}:{x4+3}]
            v_cvt_pk_bf16_f32 v{ob[q&1]}, v{z}, v{z+1}
            v_cvt_pk_bf16_f32 v{ob[q&1]+1}, v{z+2}, v{z+3}
            """)
            I(f"ds_write_b64 v{xq[q]}, v[{ob[q&1]}:{ob[q&1]+1}]")
        g.wait_lg_all()
        g.barrier()
        for e_ in range(2): I(f"ds_read_b128 v[{xt[e_]}:{xt[e_]+3}], v{xw[e_]}")
        I(f"s_add_u32 s{T[0]}, s{sXo}, 8192")
        g.wait_lg_all()
        I(f"buffer_store_dwordx4 v[{xt[0]}:{xt[0]+3}], v{vo}, s[{self.rOut}:{self.rOut+3}], s{sXo} offen")
        I(f"buffer_store_dwordx4 v[{xt[1]}:{xt[1]+3}], v{vo}, s[{self.rOut}:{self.rOut+3}], s{T[0]} offen")

def wrap(body, lds=163840):
    hdr = open("cdna_kernels/" + NAME.replace("_kernel", "") + ".s.ref").read().split("; Override")[0]
    return hdr + f"""; @launch grid=(256,1,1) block=(256,1,1) lds={lds}
.amdgcn_target "amdgcn-amd-amdhsa--gfx950"
.text
.globl {NAME}
.p2align 8
.type {NAME},@function
{NAME}:
{body}
s_endpgm
.section .rodata,"a"
.p2align 6
.amdhsa_kernel {NAME}
  .amdhsa_next_free_vgpr 512
  .amdhsa_next_free_sgpr 102
  .amdhsa_accum_offset 256
  .amdhsa_group_segment_fixed_size 0
  .amdhsa_kernarg_size 120
  .amdhsa_user_sgpr_count 2
  .amdhsa_user_sgpr_kernarg_segment_ptr 1
  .amdhsa_system_sgpr_workgroup_id_x 1
  .amdhsa_float_denorm_mode_32 3
  .amdhsa_float_denorm_mode_16_64 3
.end_amdhsa_kernel
"""

if __name__ == "__main__":
    import json
    stop = sys.argv[1]
    out = sys.argv[2]
    prof = len(sys.argv) > 3 and sys.argv[3] == 'prof'
    opt = json.loads(sys.argv[4]) if len(sys.argv) > 4 else {}
    k = Kern(stop=None if stop == 'all' else stop, prof=prof, opt=opt)
    open(out, "w").write(wrap(k.build()))
    print("written", out, "max v", k.v.maxused, "max s", k.s.maxused, "s2", k.s2.maxused)
    if prof: print("stamps:", ",".join(k.stamps))
```

```python
import sys, math
from collections import deque
sys.path.insert(0, "gen")
from asmgen import *

NAME = "recurrent_scan__ssm_conv_s4__dense_activation_silu__prompt_kernel"
WS_XN = 0
WS_ST = 2 << 20
WS_FLN = WS_ST + 0x8000
WS_FH = WS_FLN + 0x1000
WS_FS = WS_FH + 0x1000
WS_S = 3 << 20
WS_H = 5 << 20
WS_DBG = 13 << 20
WS_SIZE = 64 << 20
LOG2E = 1.4426950408889634
SPIN = 0x20000

def f2u(x):
    import struct
    return struct.unpack('<I', struct.pack('<f', x))[0]
def hx(x): return f"0x{f2u(x):08x}"

class Kern:
    KR = 0; KRP = 4160; KRCH = 4 * 4160
    XY = 33280; XYCH = 28160; YOFF = 0; XOFF = 16384
    TAB = 89600; TABCH = 4352
    U = 43520; UCH = 4608
    EX = 52736
    TOP = 131072
    CS = 131072
    LNX = 131072

    def __init__(self, stop=None, prof=False, opt=None):
        self.g = G()
        self.prof = prof
        self.stamps = []
        self.stop = stop
        self.opt = opt or {}
        self.v = RA('v', 1, 256)
        self.a = RA('a', 0, 256)
        self.s = RA('s', 34, 102)
        self.s2 = RA('s', 6, 20)
        self.bg = deque()
        self.windows = []

    def I(self, t):
        r = self.g.I(t)
        if self.g.items[-1].kind == 'vmem':
            for w in self.windows:
                if w['active']: w['foreign'] += 1
        return r
    def M(self, text):
        r = None
        for ln in text.strip().split('\n'):
            ln = ln.strip()
            if not ln or ln.startswith(';'): continue
            r = self.I(ln)
        return r
    def wvm(self, t):
        g = self.g
        if t is None or t <= g.vm_done: return
        n = g.vm - t
        for w in self.windows:
            if w['active'] and t < w['first']: n -= 8
            if t == w['last']: n -= w['foreign']
        assert 0 <= n <= 63, n
        g.I(f"s_waitcnt vmcnt({n})")
        g.vm_done = max(g.vm_done, t)
    def win_open(self):
        g = self.g
        for w in self.windows: w['active'] = False
        first = g.vm + 1; g.vm += 8
        self.windows.append(dict(first=first, last=g.vm, foreign=0, active=True))
        return g.vm
    def win_close(self):
        for w in self.windows: w['active'] = False
    def pump(self, n=1):
        for _ in range(n):
            if self.bg: self.bg.popleft()()
    def drain(self):
        while self.bg: self.bg.popleft()()

    def stamp(self, name):
        if not self.prof: return
        g = self.g
        k = len(self.stamps)
        self.stamps.append(name)
        P = self.sP2
        if k == 0:
            g.I(f"s_memrealtime s[{P}:{P+1}]")
            g.I("s_waitcnt lgkmcnt(0)")
            g.I(f"v_writelane_b32 v{self.vStamp}, s{P}, 62")
        g.I(f"s_memtime s[{P}:{P+1}]")
        g.I("s_waitcnt lgkmcnt(0)"); g.lg_done = g.lg
        g.I(f"v_writelane_b32 v{self.vStamp}, s{P}, {k}")
        if name == "end":
            g.I(f"s_memrealtime s[{P}:{P+1}]")
            g.I("s_waitcnt lgkmcnt(0)")
            g.I(f"v_writelane_b32 v{self.vStamp}, s{P}, 63")

    def finish(self):
        g = self.g
        if self.prof:
            g.wait_all()
            self.stamp("end")
            v = self.v
            a = v.alloc()
            g.I(f"s_lshl_b32 s{self.sT[0]}, s2, 10")
            g.I(f"s_lshl_b32 s{self.sT[1]}, s{self.sV}, 8")
            g.I(f"s_add_u32 s{self.sT[0]}, s{self.sT[0]}, s{self.sT[1]}")
            g.I(f"s_add_u32 s{self.sT[0]}, s{self.sT[0]}, {WS_DBG + (2 << 20)}")
            g.I(f"v_lshlrev_b32 v{a}, 2, v{self.vLane}")
            g.I(f"buffer_store_dword v{self.vStamp}, v{a}, s[{self.rWS}:{self.rWS+3}], s{self.sT[0]} offen")
        g.I("s_endpgm")
        g.raw("@@OOL@@")
        g.raw("L_codeend:")
        g.raw("L_end:")
        return g.text()

    def build(self):
        g = self.g; v = self.v; s = self.s
        self.pX, self.pAre, self.pAim, self.pBre, self.pBim, self.pCre, self.pCim, self.pLdt = 4, 6, 8, 10, 12, 14, 16, 18
        self.pDsk, self.pBx, self.pW1, self.pW2 = 20, 22, 24, 26
        self.pOut, self.pDbg, self.pWs = 28, 30, 32
        self.rX = s.alloc(4, 4); self.rW1 = s.alloc(4, 4); self.rW2 = s.alloc(4, 4)
        self.rWS = s.alloc(4, 4)
        self.sC = s.alloc(); self.sQ = s.alloc(); self.sI = s.alloc(); self.sJ = s.alloc(); self.sV = s.alloc()
        self.sLb = s.alloc(); self.sSp = s.alloc()
        self.sNon = s.alloc(2, 2)
        self.sT = [s.alloc() for _ in range(8)]
        self.sB = [s.alloc() for _ in range(2)]
        self.sP = s.alloc(2, 2); self.sP2 = s.alloc(2, 2); self.sEx = s.alloc(2, 2)
        self.vLane = v.alloc()
        if self.prof: self.vStamp = v.alloc()
        self.prologue()
        self.ln_phase()
        self.gemm1()
        if self.stop == 'g1': return self.finish()
        self.kgen()
        self.conv()
        if self.stop == 'cv': return self.finish()
        self.gemm2()
        return self.finish()

    def prologue(self):
        g = self.g; I = self.I; M = self.M; v = self.v; s = self.s; T = self.sT
        sC, sQ, sI, sJ, sV = self.sC, self.sQ, self.sI, self.sJ, self.sV
        L = self.vLane
        vt = v.alloc()
        g.I("s_cmp_ge_u32 s2, 256"); g.raw("s_cbranch_scc1 L_end")
        self.stamp("entry")
        M(f"""
        s_load_dwordx16 s[4:19], s[0:1], 0
        s_load_dwordx8 s[20:27], s[0:1], 64
        s_load_dwordx4 s[28:31], s[0:1], 96
        s_load_dwordx2 s[32:33], s[0:1], 112
        s_and_b32 s{sC}, s2, 7
        s_lshr_b32 s{sQ}, s2, 3
        s_lshr_b32 s{T[0]}, s{sC}, 1
        s_lshl_b32 s{T[0]}, s{T[0]}, 2
        s_and_b32 s{sI}, s{sQ}, 3
        s_add_u32 s{sI}, s{sI}, s{T[0]}
        s_lshr_b32 s{T[1]}, s{sQ}, 2
        s_and_b32 s{T[0]}, s{sC}, 1
        s_mul_i32 s{sJ}, s{T[0]}, 7
        s_add_u32 s{sJ}, s{sJ}, s{T[1]}
        s_lshl_b32 s{T[0]}, s{T[0]}, 3
        s_add_u32 s{T[0]}, s{T[0]}, s{T[1]}
        s_lshl_b32 s{self.sLb}, s{sI}, 4
        s_add_u32 s{self.sLb}, s{self.sLb}, s{T[0]}
        s_cmp_eq_u32 s{T[1]}, 7
        s_cselect_b32 s{self.sSp}, 1, 0
        v_and_b32 v{L}, 63, v0
        v_lshrrev_b32 v{vt}, 6, v0
        v_readfirstlane_b32 s{sV}, v{vt}
        """)
        v.free(vt)
        self.vL16 = v.alloc(); self.vXo4 = [v.alloc() for _ in range(4)]; self.vWo4 = [v.alloc() for _ in range(4)]
        self.vXo = self.vXo4[:2]; self.vWo = self.vWo4[0]
        t0 = v.alloc(); t1 = v.alloc(); t2 = v.alloc()
        M(f"""
        v_lshlrev_b32 v{self.vL16}, 4, v{L}
        v_lshrrev_b32 v{t0}, 3, v{L}
        v_lshlrev_b32 v{t0}, 10, v{t0}
        v_and_b32 v{t1}, 7, v{L}
        v_lshrrev_b32 v{t2}, 4, v{L}
        v_xor_b32 v{t1}, v{t1}, v{t2}
        v_lshlrev_b32 v{t1}, 4, v{t1}
        v_add_u32 v{self.vXo[0]}, v{t0}, v{t1}
        v_xor_b32 v{self.vXo[1]}, 64, v{self.vXo[0]}
        v_mul_u32_u24 v{t0}, 3584, v{t2}
        v_and_b32 v{t1}, 15, v{L}
        v_lshlrev_b32 v{t2}, 2, v{t2}
        v_xor_b32 v{t1}, v{t1}, v{t2}
        v_lshlrev_b32 v{t1}, 4, v{t1}
        v_add_u32 v{self.vWo}, v{t0}, v{t1}
        v_add_u32 v{self.vXo4[2]}, {2 * 7168}, v{self.vXo4[0]}
        v_add_u32 v{self.vXo4[3]}, {3 * 7168}, v{self.vXo4[1]}
        v_add_u32 v{self.vXo4[1]}, 7168, v{self.vXo4[1]}
        v_add_u32 v{self.vWo4[1]}, {13312}, v{self.vWo4[0]}
        v_add_u32 v{self.vWo4[2]}, {2 * 13312}, v{self.vWo4[0]}
        v_add_u32 v{self.vWo4[3]}, {3 * 13312}, v{self.vWo4[0]}
        """)
        v.free(t0); v.free(t1); v.free(t2)
        self.sXlds = s.alloc(); self.sXsrc = s.alloc(); self.sWsrc = s.alloc()
        self.sWf = s.alloc(); self.sWl = s.alloc()
        self.sD0 = s.alloc(); self.sCh = s.alloc(); self.sHh = s.alloc(); self.sD = s.alloc()
        self.sM = s.alloc(); self.sN = s.alloc(); self.sW2src = s.alloc(); self.sW2lds = s.alloc()
        M(f"""
        s_lshl_b32 s{self.sXlds}, s{sV}, 12
        s_lshl_b32 s{self.sXsrc}, s{sI}, 17
        s_lshl_b32 s{T[0]}, s{sV}, 15
        s_add_u32 s{self.sXsrc}, s{self.sXsrc}, s{T[0]}
        s_mul_i32 s{self.sWsrc}, s{sV}, {16 * 3584}
        s_lshl_b32 s{T[0]}, s{sJ}, 8
        s_add_u32 s{self.sWsrc}, s{self.sWsrc}, s{T[0]}
        s_lshr_b32 s{self.sWf}, s{sV}, 1
        s_and_b32 s{self.sWl}, s{sV}, 1
        s_lshl_b32 s{self.sD0}, s{sC}, 6
        s_lshl_b32 s{T[0]}, s{sQ}, 1
        s_add_u32 s{self.sD0}, s{self.sD0}, s{T[0]}
        s_lshr_b32 s{self.sCh}, s{sV}, 1
        s_and_b32 s{self.sHh}, s{sV}, 1
        s_add_u32 s{self.sD}, s{self.sD0}, s{self.sCh}
        s_and_b32 s{self.sM}, s{sQ}, 3
        s_lshl_b32 s{T[0]}, s{sC}, 2
        s_add_u32 s{self.sM}, s{self.sM}, s{T[0]}
        s_lshr_b32 s{self.sN}, s{sQ}, 2
        s_mul_i32 s{self.sW2src}, s{sV}, {448 * 1024}
        s_lshl_b32 s{T[0]}, s{self.sN}, 7
        s_add_u32 s{self.sW2src}, s{self.sW2src}, s{T[0]}
        s_lshl_b32 s{self.sW2lds}, s{sV}, 13
        """)
        self.sRot1 = s.alloc(); self.sRot2 = s.alloc(); self.sXc = s.alloc(); self.sWc = s.alloc(); self.sW2r = s.alloc()
        M(f"""
        s_lshr_b32 s{T[0]}, s{sQ}, 2
        s_and_b32 s{T[1]}, s{sQ}, 3
        s_lshl_b32 s{T[1]}, s{T[1]}, 1
        s_add_u32 s{T[0]}, s{T[0]}, s{T[1]}
        s_and_b32 s{self.sRot1}, s{T[0]}, {self.opt.get('rot1mask', 7)}
        s_sub_u32 s{T[1]}, s{T[0]}, 7
        s_cmp_ge_u32 s{T[0]}, 7
        s_cselect_b32 s{self.sRot2}, s{T[1]}, s{T[0]}
        """)
        self.g1_addr()
        I("s_waitcnt lgkmcnt(0)")
        self.stamp("kernarg")

    def srd(self, r, p, sz):
        self.M(f"""
        s_mov_b32 s{r}, s{p}
        s_and_b32 s{r+1}, s{p+1}, 0xffff
        s_mov_b32 s{r+2}, {sz}
        s_mov_b32 s{r+3}, 0x20000
        """)

    def ring_items(self, c):
        slot = (c % 4) * 32768
        it = []
        for u in range(4):
            def f(gg, u=u):
                if u == 0:
                    gg.I(f"s_add_u32 s{self.sXc}, s{self.sRot1}, {c}")
                    gg.I(f"s_and_b32 s{self.sXc}, s{self.sXc}, 7")
                    gg.I(f"s_add_u32 m0, s{self.sXlds}, {slot}")
                    gg.I(f"s_mul_i32 s{self.sWc}, s{self.sXc}, {64 * 3584}")
                    gg.I(f"s_lshl_b32 s{self.sXc}, s{self.sXc}, 7")
                    gg.I(f"s_add_u32 s{self.sXc}, s{self.sXc}, s{self.sXsrc}")
                    gg.I(f"s_add_u32 s{self.sWc}, s{self.sWc}, s{self.sWsrc}")
                return gg.I(f"buffer_load_dwordx4 v{self.vXo4[u]}, s[{self.rX}:{self.rX+3}], s{self.sXc} offen offset:{u*1024} lds")
            it.append(f)
        for u in range(4):
            def f(gg, u=u):
                if u == 0: gg.I(f"s_add_u32 m0, s{self.sXlds}, {slot + 16384}")
                return gg.I(f"buffer_load_dwordx4 v{self.vWo4[u]}, s[{self.rW1}:{self.rW1+3}], s{self.sWc} offen offset:{u*1024} lds")
            it.append(f)
        return it
    def w2_items(self, r, ldsbase):
        B = self.sB; it = []
        self.w2_lds[r] = ldsbase
        for c in range(8):
            def f(gg, c=c):
                if c == 0:
                    gg.I(f"s_add_u32 s{self.sW2r}, s{self.sRot2}, {r}")
                    gg.I(f"s_sub_u32 s{B[0]}, s{self.sW2r}, 7")
                    gg.I(f"s_cmp_ge_u32 s{self.sW2r}, 7")
                    gg.I(f"s_cselect_b32 s{self.sW2r}, s{B[0]}, s{self.sW2r}")
                    gg.I(f"s_add_u32 m0, s{self.sW2lds}, {ldsbase}")
                    gg.I(f"s_lshl_b32 s{self.sW2r}, s{self.sW2r}, 16")
                    gg.I(f"s_add_u32 s{self.sW2r}, s{self.sW2r}, s{self.sW2src}")
                if c == 4:
                    gg.I(f"s_add_u32 m0, s{self.sW2lds}, {ldsbase + 4096}")
                    gg.I(f"s_add_u32 s{self.sW2r}, s{self.sW2r}, 32768")
                return gg.I(f"buffer_load_dwordx4 v{self.vW2o4[c & 3]}, s[{self.rW2}:{self.rW2+3}], s{self.sW2r} offen offset:{(c & 3)*1024} lds")
            it.append(f)
        return it
    def issue_now(self, items):
        t = None
        for f in items:
            t = f(self.g)
            for w in self.windows:
                if w['active']: w['foreign'] += 1
        return t
    def w2_bg_issue(self, r, ldsbase, after=None):
        its = self.w2_items(r, ldsbase)
        if after is not None:
            self.bg.append(lambda: self.g.wait_lg(self.tl_w2[after]))
        for k, f in enumerate(its):
            def e(f=f, k=k):
                t = self.issue_now([f])
                if k == 7: self.tk_w2[r] = t
            self.bg.append(e)
    def w2_read_items(self, r):
        base = self.w2_lds[r]; it = []
        half = base // 65536
        for st in range(4):
            for dt in range(2):
                for hf in range(2):
                    a = self.aW2 + (r * 4 + st) * 8 + dt * 4 + 2 * hf
                    off = base - half * 65536 + (16 * st + 4 * hf) * 128
                    def f(gg, a=a, off=off, dt=dt):
                        return gg.I(f"ds_read_b64_tr_b16 a[{a}:{a+1}], v{self.vTa[half][dt]} offset:{off}")
                    it.append(f)
        return it
    def w2_bg_read(self, r):
        its = self.w2_read_items(r)
        def w(): self.wvm(self.tk_w2[r])
        self.bg.append(w)
        for k in range(0, 16, 2):
            def e(k=k):
                its[k](self.g); t = its[k + 1](self.g)
                if k == 14: self.tl_w2[r] = t
            self.bg.append(e)

    def w2_addr(self):
        I = self.I; M = self.M; v = self.v; T = self.sT; L = self.vLane
        self.vW2o4 = [v.alloc() for _ in range(4)]; self.vW2o = self.vW2o4[0]; self.vTa = [[v.alloc(), v.alloc()] for _ in range(3)]
        self.tk_w2 = {}; self.tl_w2 = {}; self.w2_lds = {}
        t0 = v.alloc(); t1 = v.alloc(); t2 = v.alloc()
        M(f"""
        v_lshrrev_b32 v{t0}, 3, v{L}
        v_lshlrev_b32 v{t0}, 10, v{t0}
        v_lshrrev_b32 v{t1}, 4, v{L}
        v_and_b32 v{t1}, 1, v{t1}
        v_lshlrev_b32 v{t1}, 2, v{t1}
        v_and_b32 v{t2}, 7, v{L}
        v_xor_b32 v{t1}, v{t1}, v{t2}
        v_lshlrev_b32 v{t1}, 4, v{t1}
        v_add_u32 v{self.vW2o}, v{t0}, v{t1}
        v_lshrrev_b32 v{t0}, 5, v{L}
        v_lshlrev_b32 v{t0}, 3, v{t0}
        v_lshrrev_b32 v{t1}, 2, v{L}
        v_and_b32 v{t1}, 3, v{t1}
        v_add_u32 v{t0}, v{t0}, v{t1}
        v_lshlrev_b32 v{t0}, 7, v{t0}
        v_lshrrev_b32 v{t2}, 4, v{L}
        v_and_b32 v{t2}, 1, v{t2}
        v_lshlrev_b32 v{t2}, 5, v{t2}
        v_add_u32 v{t0}, v{t0}, v{t2}
        v_and_b32 v{t2}, 3, v{L}
        v_lshlrev_b32 v{t2}, 3, v{t2}
        v_add_u32 v{t0}, v{t0}, v{t2}
        v_add_u32 v{t0}, s{self.sW2lds}, v{t0}
        v_lshrrev_b32 v{t1}, 1, v{t1}
        s_lshr_b32 s{T[0]}, s{self.sV}, 1
        v_xor_b32 v{t1}, s{T[0]}, v{t1}
        v_lshlrev_b32 v{t1}, 6, v{t1}
        v_add_u32 v{self.vTa[0][0]}, v{t0}, v{t1}
        v_xor_b32 v{t1}, 64, v{t1}
        v_add_u32 v{self.vTa[0][1]}, v{t0}, v{t1}
        """)
        for h in (1, 2):
            for d in range(2): I(f"v_add_u32 v{self.vTa[h][d]}, {h * 65536}, v{self.vTa[0][d]}")
        for u in range(1, 4): I(f"v_add_u32 v{self.vW2o4[u]}, {u * 7168}, v{self.vW2o4[0]}")
        for r in (t0, t1, t2): v.free(r)
        self.aW2 = self.a.alloc(224, 4)

    def g1_addr(self):
        I = self.I; M = self.M; v = self.v; T = self.sT; L = self.vLane
        sWf, sWl = self.sWf, self.sWl
        self.vXa = vXa = [[v.alloc() for _ in range(4)] for _ in range(2)]
        self.vWa = vWa = [[v.alloc() for _ in range(2)] for _ in range(2)]
        t0 = v.alloc(); t1 = v.alloc(); t2 = v.alloc()
        M(f"""
        v_and_b32 v{t0}, 31, v{L}
        v_lshrrev_b32 v{t1}, 1, v{t0}
        v_and_b32 v{t1}, 7, v{t1}
        v_lshrrev_b32 v{t2}, 5, v{L}
        v_xor_b32 v{t1}, v{t1}, v{t2}
        s_lshl_b32 s{T[0]}, s{sWl}, 13
        v_lshlrev_b32 v{t0}, 7, v{t0}
        v_add_u32 v{t0}, s{T[0]}, v{t0}
        """)
        for st in range(4):
            M(f"""
            v_xor_b32 v{t2}, {2*st}, v{t1}
            v_lshlrev_b32 v{t2}, 4, v{t2}
            v_add_u32 v{vXa[0][st]}, v{t0}, v{t2}
            v_add_u32 v{vXa[1][st]}, 0x10000, v{vXa[0][st]}
            """)
        M(f"""
        v_lshrrev_b32 v{t0}, 5, v{L}
        v_lshlrev_b32 v{t0}, 3, v{t0}
        v_lshrrev_b32 v{t1}, 2, v{L}
        v_and_b32 v{t1}, 3, v{t1}
        v_add_u32 v{t0}, v{t0}, v{t1}
        v_lshlrev_b32 v{t0}, 8, v{t0}
        v_lshrrev_b32 v{t2}, 4, v{L}
        v_and_b32 v{t2}, 1, v{t2}
        v_lshlrev_b32 v{t2}, 5, v{t2}
        v_add_u32 v{t0}, v{t0}, v{t2}
        v_and_b32 v{t2}, 3, v{L}
        v_lshlrev_b32 v{t2}, 3, v{t2}
        v_add_u32 v{t0}, v{t0}, v{t2}
        v_add_u32 v{t0}, 16384, v{t0}
        s_lshl_b32 s{T[0]}, s{sWf}, 1
        """)
        for ftl in range(2):
            M(f"""
            s_xor_b32 s{T[1]}, s{sWl}, {ftl}
            s_add_u32 s{T[1]}, s{T[0]}, s{T[1]}
            v_xor_b32 v{t2}, s{T[1]}, v{t1}
            v_lshlrev_b32 v{t2}, 6, v{t2}
            v_add_u32 v{vWa[0][ftl]}, v{t0}, v{t2}
            v_add_u32 v{vWa[1][ftl]}, 0x10000, v{vWa[0][ftl]}
            """)
        self.sel = sel = v.alloc(4, 4)
        M(f"""
        v_and_b32 v{t0}, 15, v{L}
        v_lshrrev_b32 v{t1}, 4, v{L}
        v_and_b32 v{t1}, 1, v{t1}
        v_cmp_eq_u32 vcc, v{t0}, v{t1}
        v_mov_b32 v{t2}, 0x3f803f80
        v_cndmask_b32 v{sel}, 0, v{t2}, vcc
        v_mov_b32 v{sel+1}, v{sel}
        v_mov_b32 v{sel+2}, v{sel}
        v_mov_b32 v{sel+3}, v{sel}
        """)
        for r in (t0, t1, t2): v.free(r)

    def late_addr(self):
        I = self.I; M = self.M; v = self.v; T = self.sT; L = self.vLane
        t0 = v.alloc(); t1 = v.alloc(); t2 = v.alloc()
        self.kwa0 = v.alloc()
        M(f"""
        v_lshlrev_b32 v{t0}, 2, v{L}
        s_mul_i32 s{T[0]}, s{self.sCh}, {self.XYCH}
        s_lshl_b32 s{T[1]}, s{self.sHh}, 8
        s_add_u32 s{T[0]}, s{T[0]}, s{T[1]}
        s_add_u32 s{T[0]}, s{T[0]}, {self.XY}
        v_add_u32 v{self.kwa0}, s{T[0]}, v{t0}
        """)
        self.kR0 = v.alloc(); self.kT1 = v.alloc()
        M(f"""
        v_and_b32 v{t0}, 15, v{L}
        v_lshrrev_b32 v{t1}, 4, v{L}
        v_xor_b32 v{t1}, v{t1}, v{t0}
        v_lshlrev_b32 v{t1}, 4, v{t1}
        v_lshlrev_b32 v{t0}, 9, v{t0}
        s_mul_i32 s{T[0]}, s{self.sCh}, {self.XYCH}
        s_add_u32 s{T[0]}, s{T[0]}, {self.XY}
        v_add3_u32 v{self.kR0}, v{t0}, v{t1}, s{T[0]}
        """)
        v.free(self.kT1)
        self.kvb = vb = v.alloc(); self.kvs = vs = v.alloc()
        gi = t2
        M(f"""
        s_cmp_eq_u32 s{self.sHh}, 0
        s_cselect_b32 s{T[2]}, 0, {2*516}
        s_cselect_b32 s{T[3]}, {2*4}, {2*1536}
        s_cselect_b32 s{T[4]}, 2, 512
        v_lshrrev_b32 v{gi}, 4, v{L}
        v_mov_b32 v{vb}, s{T[2]}
        v_mov_b32 v{vs}, s{T[4]}
        v_mov_b32 v{t0}, s{T[3]}
        v_cmp_eq_u32 vcc, 1, v{gi}
        v_cndmask_b32 v{vb}, v{vb}, v{t0}, vcc
        v_mov_b32 v{t0}, {2*256}
        v_mov_b32 v{t1}, 4
        v_cmp_eq_u32 vcc, 2, v{gi}
        v_cndmask_b32 v{vb}, v{vb}, v{t0}, vcc
        v_cndmask_b32 v{vs}, v{vs}, v{t1}, vcc
        v_mov_b32 v{t0}, {2*512}
        v_mov_b32 v{t1}, 512
        v_cmp_eq_u32 vcc, 3, v{gi}
        v_cndmask_b32 v{vb}, v{vb}, v{t0}, vcc
        v_cndmask_b32 v{vs}, v{vs}, v{t1}, vcc
        v_and_b32 v{t0}, 15, v{L}
        v_lshlrev_b32 v{t0}, 4, v{t0}
        s_mul_i32 s{T[0]}, s{self.sCh}, {self.TABCH}
        s_add_u32 s{T[0]}, s{T[0]}, {self.TAB + 2}
        v_add3_u32 v{vb}, v{vb}, v{t0}, s{T[0]}
        """)
        self.ktw = v.alloc(); self.kta = [v.alloc() for _ in range(4)]
        tz = t2; P_ = self.sP
        M(f"""
        v_cmp_le_u32 vcc, 3, v{L}
        v_mov_b32 v{t0}, {self.TABCH}
        v_cndmask_b32 v{tz}, 0, v{t0}, vcc
        v_add_u32 v{tz}, {self.TAB}, v{tz}
        v_mov_b32 v{t0}, {self.KRCH - 48}
        v_cndmask_b32 v{self.ktw}, 0, v{t0}, vcc
        v_lshlrev_b32 v{t0}, 4, v{L}
        v_add_u32 v{self.ktw}, v{self.ktw}, v{t0}
        v_add_u32 v{self.ktw}, {4096 + self.KR}, v{self.ktw}
        v_cmp_eq_u32 vcc, 0, v{L}
        v_cmp_eq_u32 s[{P_}:{P_+1}], 3, v{L}
        s_or_b64 vcc, vcc, s[{P_}:{P_+1}]
        """)
        for idx, kk in enumerate((3, 2, 1, 0)):
            I(f"v_add_u32 v{t0}, {2 * (kk + 1)}, v{tz}")
            I(f"v_cndmask_b32 v{self.kta[idx]}, v{tz}, v{t0}, vcc")
        self.vKA = vKA = v.alloc(); self.vUB = vUB = v.alloc(); self.vSo = v.alloc()
        M(f"""
        v_and_b32 v{t0}, 3, v{L}
        v_mul_u32_u24 v{vKA}, {self.KRP}, v{t0}
        v_lshrrev_b32 v{t1}, 4, v{L}
        v_lshlrev_b32 v{t1}, 4, v{t1}
        v_sub_u32 v{vKA}, v{vKA}, v{t1}
        v_and_b32 v{t0}, 15, v{L}
        v_lshrrev_b32 v{t2}, 2, v{t0}
        v_lshlrev_b32 v{t2}, 3, v{t2}
        v_sub_u32 v{vKA}, v{vKA}, v{t2}
        s_mul_i32 s{T[0]}, s{self.sCh}, {self.KRCH}
        s_lshl_b32 s{T[1]}, s{self.sHh}, 8
        s_sub_u32 s{T[0]}, s{T[0]}, s{T[1]}
        s_add_u32 s{T[0]}, s{T[0]}, {self.KR + 2 * 2056 - 64 * 63 + 256}
        v_add_u32 v{vKA}, s{T[0]}, v{vKA}
        v_lshlrev_b32 v{vUB}, 5, v{t0}
        v_sub_u32 v{vUB}, v{vUB}, v{t1}
        s_mul_i32 s{T[0]}, s{self.sCh}, {self.UCH}
        s_sub_u32 s{T[0]}, s{T[0]}, s{T[1]}
        s_add_u32 s{T[0]}, s{T[0]}, {self.U + 2 * 264 - 192}
        v_add_u32 v{vUB}, s{T[0]}, v{vUB}
        v_lshlrev_b32 v{self.vSo}, 5, v{t0}
        v_lshrrev_b32 v{t1}, 1, v{t1}
        v_add_u32 v{self.vSo}, v{self.vSo}, v{t1}
        """)
        for r in (t0, t1, t2): v.free(r)

    def poison_s(self):
        I = self.I; M = self.M; v = self.v; T = self.sT
        d = v.alloc(4, 4); a = v.alloc()
        for k in range(4): I(f"v_mov_b32 v{d+k}, -1")
        M(f"""
        v_lshlrev_b32 v{a}, 4, v0
        s_lshl_b32 s{T[0]}, s{self.sD0}, 12
        s_add_u32 s{T[0]}, s{T[0]}, {WS_S}
        s_add_u32 s{T[1]}, s{T[0]}, 4096
        """)
        I(f"buffer_store_dwordx4 v[{d}:{d+3}], v{a}, s[{self.rWS}:{self.rWS+3}], s{T[0]} offen sc1")
        I(f"buffer_store_dwordx4 v[{d}:{d+3}], v{a}, s[{self.rWS}:{self.rWS+3}], s{T[1]} offen sc1")
        v.free(d, 4); v.free(a)

    def kg_expand_addr(self):
        I = self.I; M = self.M; v = self.v
        self.xa = [v.alloc() for _ in range(12)]
        f0 = v.alloc(); f1 = v.alloc(); jb = v.alloc()
        M(f"""
        v_lshlrev_b32 v{jb}, 3, v0
        v_sub_u32 v{jb}, 2048, v{jb}
        """)
        for k in range(0, 12, 2):
            e0 = k - 4; e1 = k - 3
            M(f"""
            v_add_u32 v{f0}, {-e0}, v{jb}
            v_add_u32 v{f1}, {-e1}, v{jb}
            v_min_u32 v{f0}, 2048, v{f0}
            v_min_u32 v{f1}, 2048, v{f1}
            v_cvt_f32_u32 v{f0}, v{f0}
            v_cvt_f32_u32 v{f1}, v{f1}
            v_cvt_pk_bf16_f32 v{f0}, v{f0}, v{f1}
            v_and_b32 v{f1}, 0xffff0000, v{f0}
            v_lshlrev_b32 v{f0}, 16, v{f0}
            v_cvt_u32_f32 v{f0}, v{f0}
            v_cvt_u32_f32 v{f1}, v{f1}
            v_lshlrev_b32 v{f0}, 1, v{f0}
            v_lshlrev_b32 v{f1}, 1, v{f1}
            v_add_u32 v{self.xa[k]}, {self.TAB + 2}, v{f0}
            v_add_u32 v{self.xa[k+1]}, {self.TAB + 2}, v{f1}
            """)
        v.free(f0); v.free(f1); v.free(jb)

    def nonce_issue(self):
        v = self.v
        self.vNon = v.alloc(2, 2); ta = v.alloc()
        self.I(f"v_mov_b32 v{ta}, 0")
        self.tk_non = self.I(f"global_load_dwordx2 v[{self.vNon}:{self.vNon+1}], v{ta}, s[{self.pDbg}:{self.pDbg+1}] sc1")
        self.vNonA = ta
    def nonce_check(self):
        g = self.g; v = self.v
        tv = self.vNon; ta = self.vNonA
        lp = g.label("L_np"); dn = g.label("L_nd")
        self.wvm(self.tk_non)
        g.M(f"""
        v_readfirstlane_b32 s{self.sNon}, v{tv}
        v_readfirstlane_b32 s{self.sNon+1}, v{tv+1}
        s_mov_b32 s{self.sT[1]}, 0
        s_cmp_lg_u32 s{self.sNon}, 0
        s_cbranch_scc1 {dn}
        """)
        g.L(lp)
        g.raw(f"global_load_dwordx2 v[{tv}:{tv+1}], v{ta}, s[{self.pDbg}:{self.pDbg+1}] sc1")
        g.M(f"""
        s_waitcnt vmcnt(0)
        v_readfirstlane_b32 s{self.sNon}, v{tv}
        v_readfirstlane_b32 s{self.sNon+1}, v{tv+1}
        s_add_u32 s{self.sT[1]}, s{self.sT[1]}, 1
        s_cmp_lg_u32 s{self.sNon}, 0
        s_cbranch_scc1 {dn}
        s_cmp_gt_u32 s{self.sT[1]}, {SPIN}
        s_cbranch_scc1 {dn}
        s_sleep 2
        s_branch {lp}
        """)
        g.L(dn)
        v.free(tv, 2); v.free(ta)
    def poll_issue(self, addr_v, n=1, stride=512):
        v = self.v
        regs = [v.alloc(2, 2) for _ in range(n)]
        t = None
        for k, r in enumerate(regs):
            t = self.I(f"buffer_load_dwordx2 v[{r}:{r+1}], v{addr_v}, s[{self.rWS}:{self.rWS+3}], 0 offen offset:{k*stride} sc1")
        return (regs, t, addr_v, stride)
    def poll_check(self, h):
        g = self.g; v = self.v
        regs, t, addr_v, stride = h
        N = self.sNon; P = self.sP
        lp = g.label("L_pp"); dn = g.label("L_pd")
        def cmp():
            g.I(f"v_cmp_eq_u64 vcc, s[{N}:{N+1}], v[{regs[0]}:{regs[0]+1}]")
            for r in regs[1:]:
                g.I(f"v_cmp_eq_u64 s[{P}:{P+1}], s[{N}:{N+1}], v[{r}:{r+1}]")
                g.I(f"s_and_b64 vcc, vcc, s[{P}:{P+1}]")
            g.I("s_cmp_eq_u64 vcc, exec")
        self.wvm(t)
        cmp()
        g.I(f"s_cbranch_scc1 {dn}")
        g.I(f"s_mov_b32 s{self.sT[1]}, 0")
        g.L(lp)
        for k, r in enumerate(regs):
            g.raw(f"buffer_load_dwordx2 v[{r}:{r+1}], v{addr_v}, s[{self.rWS}:{self.rWS+3}], 0 offen offset:{k*stride} sc1")
        g.I("s_waitcnt vmcnt(0)")
        cmp()
        g.M(f"""
        s_cbranch_scc1 {dn}
        s_add_u32 s{self.sT[1]}, s{self.sT[1]}, 1
        s_cmp_gt_u32 s{self.sT[1]}, {SPIN}
        s_cbranch_scc1 {dn}
        s_sleep 1
        s_branch {lp}
        """)
        g.L(dn)
        for r in regs: v.free(r, 2)
        v.free(addr_v)
    def set_flag(self, base, idx_sgpr):
        g = self.g; v = self.v
        tv = v.alloc(2, 2); ta = v.alloc()
        lab = g.label("L_sf")
        g.M(f"""
        s_cmp_lg_u32 s{self.sV}, 0
        s_cbranch_scc1 {lab}
        s_lshl_b32 s{self.sT[1]}, s{idx_sgpr}, 3
        s_add_u32 s{self.sT[1]}, s{self.sT[1]}, {base}
        v_mov_b32 v{ta}, s{self.sT[1]}
        v_mov_b32 v{tv}, s{self.sNon}
        v_mov_b32 v{tv+1}, s{self.sNon+1}
        s_mov_b64 s[{self.sEx}:{self.sEx+1}], exec
        s_mov_b64 exec, 1
        """)
        g.raw(f"buffer_store_dwordx2 v[{tv}:{tv+1}], v{ta}, s[{self.rWS}:{self.rWS+3}], 0 offen sc1")
        g.I(f"s_mov_b64 exec, s[{self.sEx}:{self.sEx+1}]")
        g.L(lab)
        v.free(tv, 2); v.free(ta)

    def ln_phase(self):
        g = self.g; I = self.I; M = self.M; v = self.v; T = self.sT
        sV = self.sV
        if self.opt.get('touch', 1): self.tlb_touch()
        self.srd(self.rX, self.pX, 2 << 20)
        self.lnx = [v.alloc(4, 4), v.alloc(4, 4)]
        xa, xb = self.lnx
        self.sRow = self.s.alloc()
        M(f"""
        s_lshl_b32 s{self.sRow}, s{self.sLb}, 3
        s_lshl_b32 s{T[0]}, s{sV}, 1
        s_add_u32 s{self.sRow}, s{self.sRow}, s{T[0]}
        s_lshl_b32 s{T[0]}, s{self.sRow}, 10
        """)
        I(f"buffer_load_dwordx4 v[{xa}:{xa+3}], v{self.vL16}, s[{self.rX}:{self.rX+3}], s{T[0]} offen")
        self.tk_lnx = I(f"buffer_load_dwordx4 v[{xb}:{xb+3}], v{self.vL16}, s[{self.rX}:{self.rX+3}], s{T[0]} offen offset:1024")
        self.srd(self.rW1, self.pW1, 512 * 1792 * 2)
        self.tk_chunk = {}
        self.tk_chunk[0] = self.issue_now(self.ring_items(0))
        self.stamp("p_c0")
        self.srd(self.rWS, self.pWs, WS_SIZE)
        self.srd(self.rW2, self.pW2, 512 * 1792 * 2)
        lab = g.label("L_non")
        tv = v.alloc(2, 2); ta = v.alloc()
        g.M(f"""
        s_or_b32 s{T[0]}, s2, s{sV}
        s_cmp_lg_u32 s{T[0]}, 0
        s_cbranch_scc1 {lab}
        s_memrealtime s[{self.sP2}:{self.sP2+1}]
        s_waitcnt lgkmcnt(0)
        s_or_b32 s{self.sP2}, s{self.sP2}, 1
        v_mov_b32 v{tv}, s{self.sP2}
        v_mov_b32 v{tv+1}, s{self.sP2+1}
        v_mov_b32 v{ta}, 0
        s_mov_b64 s[{self.sEx}:{self.sEx+1}], exec
        s_mov_b64 exec, 1
        """)
        g.raw(f"global_store_dwordx2 v{ta}, v[{tv}:{tv+1}], s[{self.pDbg}:{self.pDbg+1}] sc1")
        g.I(f"s_mov_b64 exec, s[{self.sEx}:{self.sEx+1}]")
        g.L(lab)
        v.free(tv, 2); v.free(ta)
        PRE = self.opt.get('pre', 2); C1E = self.opt.get('c1early', 0)
        if C1E: self.tk_chunk[1] = self.issue_now(self.ring_items(1))
        self.stamp("p_c1")
        order = self.opt.get('porder', 'AC')
        for ch in order:
            if ch == 'P': self.kg_params_issue(); self.stamp("p_par")
            if ch == 'A':
                self.kg_expand_addr(); self.w2_addr(); self.late_addr(); self.stamp("p_addr")
            if ch == 'X': self.poison_s(); self.stamp("p_poi")
            if ch == 'C' and self.opt.get('codepf', True): self.code_prefetch(); self.stamp("p_pf")
        self.deferred = [ch for ch in 'PX' if ch not in order]
        if not C1E: self.tk_chunk[1] = self.issue_now(self.ring_items(1))
        if PRE >= 3: self.tk_chunk[2] = self.issue_now(self.ring_items(2))
        self.stamp("issued")

    def tlb_touch(self):
        g = self.g; v = self.v
        z = v.alloc(); d = v.alloc()
        self.touch_regs = (z, d)
        g.I(f"v_mov_b32 v{z}, 0")
        lvl = self.opt.get('touch', 1)
        if lvl < 3:
            ptrs = [self.pX, self.pW1] + ([self.pW2] if self.opt.get('touch_w2', 1) else [])
            if lvl >= 2: ptrs += [self.pW2, self.pAre, self.pAim, self.pBre, self.pBim, self.pCre, self.pCim, self.pLdt, self.pDsk, self.pOut]
            for p in ptrs:
                self.I(f"global_load_dword v{d}, v{z}, s[{p}:{p+1}]")
        else:
            lists = [[self.pX, self.pW2, ('ws', 0), ('ws', 4), self.pAre, self.pCim],
                     [self.pW1, ('ws', 1), ('ws', 5), self.pAim, self.pLdt],
                     [('ws', 2), ('ws', 6), self.pBre, self.pDsk, self.pOut],
                     [('ws', 3), self.pBim, self.pCre, self.pDbg]]
            skip = self.opt.get('tskip', '')
            def keep(p):
                if isinstance(p, tuple): return 'w' not in skip
                if p == self.pDbg: return 'd' not in skip
                if p == self.pW2: return '2' not in skip
                if p == self.pOut: return 'o' not in skip
                if p in (self.pX, self.pW1): return 'x' not in skip
                return 'p' not in skip
            lists = [[p for p in l if keep(p)] for l in lists]
            P = self.sP
            end = g.label("L_tt")
            for w in range(4):
                nxt = g.label("L_tw")
                g.I(f"s_cmp_lg_u32 s{self.sV}, {w}"); g.I(f"s_cbranch_scc1 {nxt}")
                for p in lists[w]:
                    if isinstance(p, tuple):
                        g.I(f"s_add_u32 s{P}, s{self.pWs}, {(p[1] + self.opt.get('tpage', 0)) * (2 << 20) + self.opt.get('toff', 0)}")
                        g.I(f"s_addc_u32 s{P+1}, s{self.pWs+1}, 0")
                        g.raw(f"global_load_dword v{d}, v{z}, s[{P}:{P+1}]")
                    else:
                        g.raw(f"global_load_dword v{d}, v{z}, s[{p}:{p+1}]")
                g.I(f"s_branch {end}")
                g.L(nxt)
            g.L(end)
        self.stamp("p_touch")

    def ln_stream(self):
        v = self.v; s = self.s; T = self.sT; LNX = self.LNX
        xa, xb = self.lnx; X = [xa, xb]
        p1a, p1b, p2 = [], [], []
        def add(lst, text):
            for ln in text.strip().split('\n'):
                ln = ln.strip()
                if ln: lst.append(lambda gg, ln=ln: gg.I(ln))
        ones = s.alloc(); sm = [s.alloc() for _ in range(4)]
        s1 = [v.alloc(), v.alloc()]; s2 = [v.alloc(), v.alloc()]
        add(p1a, f"s_mov_b32 s{ones}, 0x3f803f80")
        for r in range(2):
            add(p1a, f"v_dot2_f32_bf16 v{s1[r]}, v{X[r]}, s{ones}, 0")
            add(p1a, f"v_dot2_f32_bf16 v{s2[r]}, v{X[r]}, v{X[r]}, 0")
        for k in range(1, 4):
            for r in range(2):
                add(p1a, f"v_dot2_f32_bf16 v{s1[r]}, v{X[r]+k}, s{ones}, v{s1[r]}")
                add(p1a, f"v_dot2_f32_bf16 v{s2[r]}, v{X[r]+k}, v{X[r]+k}, v{s2[r]}")
        red = [s1[0], s2[0], s1[1], s2[1]]
        for mod in ("row_shr:1 row_mask:0xf bank_mask:0xf bound_ctrl:0", "row_shr:2 row_mask:0xf bank_mask:0xf bound_ctrl:0",
                    "row_shr:4 row_mask:0xf bank_mask:0xf bound_ctrl:0", "row_shr:8 row_mask:0xf bank_mask:0xf bound_ctrl:0",
                    "row_bcast:15 row_mask:0xa bank_mask:0xf", "row_bcast:31 row_mask:0xc bank_mask:0xf"):
            for r in red: add(p1a, f"v_add_f32_dpp v{r}, v{r}, v{r} {mod}")
        for r, sg in zip(red, sm): add(p1a, f"v_readlane_b32 s{sg}, v{r}, 63")
        st = [v.alloc(4, 4), v.alloc(4, 4)]
        mf = [v.alloc(), v.alloc()]; tm = [v.alloc(), v.alloc()]; tn = [v.alloc(), v.alloc()]
        inv512 = hx(1.0 / 512)
        seq = lambda r: f"""
            v_mov_b32 v{tm[r]}, s{sm[2*r]}
            v_mul_f32 v{tm[r]}, {inv512}, v{tm[r]}
            v_mov_b32 v{tn[r]}, s{sm[2*r+1]}
            v_mul_f32 v{tn[r]}, {inv512}, v{tn[r]}
            v_fma_f32 v{tn[r]}, -v{tm[r]}, v{tm[r]}, v{tn[r]}
            v_max_f32 v{tn[r]}, 0, v{tn[r]}
            v_cvt_pk_bf16_f32 v{tm[r]}, v{tm[r]}, v{tm[r]}
            v_and_b32 v{mf[r]}, 0xffff0000, v{tm[r]}
            v_xor_b32 v{st[r]}, 0x80008000, v{tm[r]}
            v_cvt_pk_bf16_f32 v{tn[r]}, v{tn[r]}, v{tn[r]}
            v_and_b32 v{tn[r]}, 0xffff0000, v{tn[r]}
            v_add_f32 v{tn[r]}, {hx(1e-5)}, v{tn[r]}
            v_cvt_pk_bf16_f32 v{tn[r]}, v{tn[r]}, v{tn[r]}
            v_and_b32 v{tn[r]}, 0xffff0000, v{tn[r]}
            v_sqrt_f32 v{tn[r]}, v{tn[r]}
            v_cvt_pk_bf16_f32 v{tn[r]}, v{tn[r]}, v{tn[r]}
            v_and_b32 v{tn[r]}, 0xffff0000, v{tn[r]}
            v_rcp_f32 v{st[r]+1}, v{tn[r]}
            """.strip().split('\n')
        for la, lb_ in zip(seq(0), seq(1)):
            add(p1a, la); add(p1a, lb_)
        ta = v.alloc()
        pst = []
        add(pst, f"""
            v_mov_b32 v{st[0]+2}, s{self.sNon}
            v_mov_b32 v{st[0]+3}, s{self.sNon+1}
            v_mov_b32 v{st[1]+2}, s{self.sNon}
            v_mov_b32 v{st[1]+3}, s{self.sNon+1}
            s_lshl_b32 s{ones}, s{self.sRow}, 4
            s_add_u32 s{ones}, s{ones}, {WS_ST}
            v_lshlrev_b32 v{ta}, 28, v{self.vLane}
            """)
        def st_store(r):
            def f(gg):
                t = gg.I(f"buffer_store_dwordx4 v[{st[r]}:{st[r]+3}], v{ta}, s[{self.rWS}:{self.rWS+3}], s{ones} offen offset:{16*r} sc1")
                self.note_foreign(gg)
            return f
        pst.append(st_store(0)); pst.append(st_store(1))
        n = [v.alloc(8), v.alloc(8)]; dp = [v.alloc(), v.alloc()]
        for k in range(4):
            sq = []
            for r in range(2):
                lo = n[r] + 2 * k; hi = lo + 1
                sq.append(f"""
                v_lshlrev_b32 v{lo}, 16, v{X[r]+k}
                v_and_b32 v{hi}, 0xffff0000, v{X[r]+k}
                v_sub_f32 v{lo}, v{lo}, v{mf[r]}
                v_sub_f32 v{hi}, v{hi}, v{mf[r]}
                v_cvt_pk_bf16_f32 v{dp[r]}, v{lo}, v{hi}
                v_lshlrev_b32 v{lo}, 16, v{dp[r]}
                v_and_b32 v{hi}, 0xffff0000, v{dp[r]}
                v_mul_f32 v{lo}, v{lo}, v{st[r]+1}
                v_mul_f32 v{hi}, v{hi}, v{st[r]+1}
                """.strip().split('\n'))
            for la, lb_ in zip(*sq):
                add(p1b, la); add(p1b, lb_)
        wa = v.alloc()
        add(p1b, f"""
            s_lshl_b32 s{sm[0]}, s{self.sV}, 2
            s_add_u32 s{sm[0]}, s{sm[0]}, {LNX}
            v_add_u32 v{wa}, s{sm[0]}, v{self.vL16}
            """)
        for e in range(8):
            add(p1b, f"v_cvt_pk_bf16_f32 v{n[0]+e}, v{n[0]+e}, v{n[1]+e}")
            add(p1b, f"ds_write_b32 v{wa}, v{n[0]+e} offset:{e * 65 * 16}")
        ra = v.alloc(); ga = v.alloc(); u0 = v.alloc(4, 4); u1 = v.alloc(4, 4)
        add(p1b, f"""
            v_and_b32 v{ra}, 7, v0
            v_mul_u32_u24 v{ra}, 65, v{ra}
            v_lshrrev_b32 v{ga}, 3, v0
            v_add_u32 v{ra}, v{ra}, v{ga}
            v_lshlrev_b32 v{ra}, 4, v{ra}
            v_add_u32 v{ra}, {LNX}, v{ra}
            v_lshlrev_b32 v{ga}, 4, v0
            s_lshl_b32 s{sm[1]}, s{self.sLb}, 13
            """)
        tk = {}
        def rd(gg):
            gg.I(f"ds_read_b128 v[{u0}:{u0+3}], v{ra}")
            tk['u'] = gg.I(f"ds_read_b128 v[{u1}:{u1+3}], v{ra} offset:{32 * 16}")
        p2.append(rd)
        add(p2, f"v_add_u32 v{ra}, 4096, v{ga}")
        p3 = []
        def sto(gg):
            gg.wait_lg(tk['u'])
            gg.I(f"buffer_store_dwordx4 v[{u0}:{u0+3}], v{ga}, s[{self.rWS}:{self.rWS+3}], s{sm[1]} offen sc1")
            self.note_foreign(gg)
            t = gg.I(f"buffer_store_dwordx4 v[{u1}:{u1+3}], v{ra}, s[{self.rWS}:{self.rWS+3}], s{sm[1]} offen sc1")
            self.note_foreign(gg)
            if gg is self.g: self.tk_ln = t
        p3.append(sto)
        def free():
            for r_, n_ in ((xa, 4), (xb, 4), (st[0], 4), (st[1], 4), (n[0], 8), (n[1], 8), (u0, 4), (u1, 4)): v.free(r_, n_)
            for r_ in s1 + s2 + mf + tm + tn + dp + [wa, ta, ra, ga]: v.free(r_)
            for r_ in [ones] + sm: s.free(r_)
        return p1a, pst, p1b, p2, p3, free

    def note_foreign(self, gg):
        if gg is self.g:
            for w in self.windows:
                if w['active']: w['foreign'] += 1

    def code_prefetch(self):
        g = self.g; v = self.v; T = self.sT; P = self.sP2
        lab = g.label("L_pf"); here = g.label("L_here")
        d = v.alloc(4, 4); a = v.alloc()
        g.I(f"s_and_b32 s{T[0]}, s{self.sQ}, 7")
        g.I(f"s_cmp_lg_u32 s{T[0]}, 0")
        g.I(f"s_cbranch_scc1 {lab}")
        g.raw(f"s_getpc_b64 s[{P}:{P+1}]")
        g.raw(f"{here}:")
        g.raw(f"v_lshlrev_b32 v{a}, 4, v0")
        g.raw(f"s_mov_b32 s{T[0]}, (L_codeend - {here} + 4095) / 4096")
        lp = g.label("L_pfl")
        g.raw(f"{lp}:")
        g.raw(f"global_load_dwordx4 v[{d}:{d+3}], v{a}, s[{P}:{P+1}]")
        g.raw(f"v_add_u32 v{a}, 4096, v{a}")
        g.raw(f"s_sub_u32 s{T[0]}, s{T[0]}, 1")
        g.raw(f"s_cmp_lg_u32 s{T[0]}, 0")
        g.raw(f"s_cbranch_scc1 {lp}")
        g.L(lab)
        self.pf_regs = (d, a)

    def kg_params_issue(self):
        I = self.I; M = self.M; v = self.v; T = self.sT
        po = v.alloc(); pd = v.alloc()
        B = self.sB
        M(f"""
        s_lshl_b32 s{B[0]}, s{self.sD}, 8
        s_lshl_b32 s{B[1]}, s{self.sHh}, 7
        s_add_u32 s{B[0]}, s{B[0]}, s{B[1]}
        v_lshlrev_b32 v{po}, 1, v{self.vLane}
        v_add_u32 v{po}, s{B[0]}, v{po}
        s_lshl_b32 s{B[0]}, s{self.sD}, 1
        v_mov_b32 v{pd}, s{B[0]}
        """)
        self.kp = [v.alloc() for _ in range(8)]
        for r, p in zip(self.kp[:6], (self.pAre, self.pAim, self.pBre, self.pBim, self.pCre, self.pCim)):
            I(f"global_load_ushort v{r}, v{po}, s[{p}:{p+1}]")
        I(f"global_load_ushort v{self.kp[6]}, v{pd}, s[{self.pLdt}:{self.pLdt+1}]")
        self.tk_kp = I(f"global_load_ushort v{self.kp[7]}, v{pd}, s[{self.pDsk}:{self.pDsk+1}]")
        v.free(po); v.free(pd)

    def gemm1(self):
        LNX_C = self.opt.get('lnx_c', 4); LNF_C = self.opt.get('lnf_c', 6)
        g = self.g; I = self.I; M = self.M; v = self.v; T = self.sT; s = self.s
        L = self.vLane; sV = self.sV; sWf = self.sWf; sWl = self.sWl
        vXa, vWa, sel = self.vXa, self.vWa, self.sel
        A = [[v.alloc(4, 4) for _ in range(2)] for _ in range(2)]
        B = [[v.alloc(4, 4) for _ in range(2)] for _ in range(2)]
        acc = [[v.alloc(16, 4) for _ in range(2)] for _ in range(2)]
        cs = v.alloc(4, 4)

        def read_list(c, st, buf):
            half = (c % 4) // 2; so = (c & 1) * 32768
            def tr(ftl, hf):
                a = A[buf][ftl] + 2 * hf
                return f"ds_read_b64_tr_b16 v[{a}:{a+1}], v{vWa[half][ftl]} offset:{so + (16*st + 4*hf) * 256}"
            def xb(lt):
                b = B[buf][lt]
                return f"ds_read_b128 v[{b}:{b+3}], v{vXa[half][st]} offset:{so + lt * 4096}"
            return [[tr(0, 0), tr(0, 1)], [xb(0), xb(1)], [tr(1, 0), tr(1, 1)], []]
        def mf(gg, buf, ftl, lt, first):
            d = acc[ftl][lt]
            c_ = "0" if first else f"v[{d}:{d+15}]"
            gg.I(f"v_mfma_f32_32x32x16_bf16 v[{d}:{d+15}], v[{A[buf][ftl]}:{A[buf][ftl]+3}], v[{B[buf][lt]}:{B[buf][lt]+3}], {c_}")

        p1a, pst, p1b, p2, p3, ln_free = self.ln_stream()
        vq = deque(p1a)
        dq = deque()
        def queue_dma(items, setter):
            for k, f in enumerate(items):
                def e(f=f, k=k):
                    t = f(g)
                    if k == len(items) - 1: setter(t)
                dq.append(e)
        if 2 not in self.tk_chunk: queue_dma(self.ring_items(2), lambda t: self.tk_chunk.__setitem__(2, t))
        queue_dma(self.ring_items(3), lambda t: self.tk_chunk.__setitem__(3, t))
        self.wvm(self.tk_chunk[0])
        g.barrier()
        self.stamp("chunk0")
        tks = []
        for grp in read_list(0, 0, 0):
            for t in grp: tks.append(g.I(t))
        cur = dict(B0=tks[2], B1=tks[3], A1=tks[5])
        buf = 0
        NB = self.opt.get('bg_per_gap', 3)
        for c in range(8):
            for st in range(4):
                first = (c == 0 and st == 0)
                if (c, st) == (1, 0): self.nonce_issue()
                if (c, st) == (2, 1):
                    assert not vq, len(vq)
                    self.nonce_check()
                    vq.extend(pst); vq.extend(p1b)
                if (c, st) == (3, 0) and 'X' in self.deferred: dq.append(self.poison_s)
                if (c, st) == (5, 2) and 'P' in self.deferred: dq.append(self.kg_params_issue)
                if (c, st) == (6, 2):
                    self.stt = [v.alloc(4, 4), v.alloc(4, 4)]
                    self.vSa = v.alloc()
                    M(f"""
                    v_and_b32 v{self.vSa}, 31, v{L}
                    v_lshlrev_b32 v{self.vSa}, 4, v{self.vSa}
                    s_lshl_b32 s{T[0]}, s{self.sI}, 11
                    s_lshl_b32 s{T[1]}, s{sWl}, 10
                    s_add_u32 s{T[0]}, s{T[0]}, s{T[1]}
                    s_add_u32 s{T[0]}, s{T[0]}, {WS_ST}
                    v_add_u32 v{self.vSa}, s{T[0]}, v{self.vSa}
                    """)
                    I(f"buffer_load_dwordx4 v[{self.stt[0]}:{self.stt[0]+3}], v{self.vSa}, s[{self.rWS}:{self.rWS+3}], 0 offen sc1")
                    self.tk_st = I(f"buffer_load_dwordx4 v[{self.stt[1]}:{self.stt[1]+3}], v{self.vSa}, s[{self.rWS}:{self.rWS+3}], 0 offen offset:512 sc1")
                if st == 3:
                    g.wait_lg(cur['A1'])
                    if c < 7:
                        if c == LNX_C:
                            assert not vq, len(vq)
                            g.wait_lg_all()
                        while (c + 1) not in self.tk_chunk: dq.popleft()()
                        self.wvm(self.tk_chunk[c + 1])
                        if c == LNF_C: self.wvm(self.tk_ln)
                        self.stamp(f"c{c}")
                        g.barrier()
                        if c == LNX_C: vq.extend(p2); vq.extend(p3)
                        if c == LNF_C: self.set_flag(WS_FLN, self.sLb)
                        if c < 4:
                            queue_dma(self.ring_items(c + 4), lambda t, c=c: self.tk_chunk.__setitem__(c + 4, t))
                        else:
                            queue_dma(self.w2_items(c - 4, (c % 4) * 32768), lambda t, c=c: self.tk_w2.__setitem__(c - 4, t))
                nxt = (c, st + 1) if st < 3 else ((c + 1, 0) if c < 7 else None)
                rl = read_list(nxt[0], nxt[1], buf ^ 1) if nxt else [[], [], [], []]
                order = [(0, 0), (0, 1), (1, 0), (1, 1)]
                need = [cur['B1'], None, cur['A1'], None]
                tk = []
                ndma = 3 if len(dq) > 8 else 2
                for k, (ftl, lt) in enumerate(order):
                    g.wait_lg(need[k])
                    mf(g, buf, ftl, lt, first)
                    for t in rl[k]: tk.append(g.I(t))
                    isd = (k in (0, 2)) or (k == 3 and ndma == 3)
                    if isd and dq: dq.popleft()()
                    for _ in range(NB + (1 if k == 3 else 0) - (1 if isd else 0)):
                        if vq: vq.popleft()(g)
                c_ = "0" if first else f"v[{cs}:{cs+3}]"
                g.I(f"v_mfma_f32_16x16x32_bf16 v[{cs}:{cs+3}], v[{sel}:{sel+3}], v[{A[buf][0]}:{A[buf][0]+3}], {c_}")
                if tk: cur = dict(B0=tk[2], B1=tk[3], A1=tk[5])
                buf ^= 1
        while dq: dq.popleft()()
        while vq: vq.popleft()(g)
        ln_free()
        self.stamp("g1_loop")
        stt = self.stt
        N = self.sNon; P = self.sP
        lp = g.label("L_sp"); dn = g.label("L_sd")
        def stcmp():
            g.I(f"v_cmp_eq_u64 vcc, s[{N}:{N+1}], v[{stt[0]+2}:{stt[0]+3}]")
            g.I(f"v_cmp_eq_u64 s[{P}:{P+1}], s[{N}:{N+1}], v[{stt[1]+2}:{stt[1]+3}]")
            g.I(f"s_and_b64 vcc, vcc, s[{P}:{P+1}]")
            g.I("s_cmp_eq_u64 vcc, exec")
        self.wvm(self.tk_st)
        self.stamp("st_wait")
        stcmp()
        g.I(f"s_cbranch_scc1 {dn}")
        g.I(f"s_mov_b32 s{T[1]}, 0")
        g.L(lp)
        g.raw(f"buffer_load_dwordx4 v[{stt[0]}:{stt[0]+3}], v{self.vSa}, s[{self.rWS}:{self.rWS+3}], 0 offen sc1")
        g.raw(f"buffer_load_dwordx4 v[{stt[1]}:{stt[1]+3}], v{self.vSa}, s[{self.rWS}:{self.rWS+3}], 0 offen offset:512 sc1")
        g.I("s_waitcnt vmcnt(0)")
        stcmp()
        g.M(f"""
        s_cbranch_scc1 {dn}
        s_add_u32 s{T[1]}, s{T[1]}, 1
        s_cmp_gt_u32 s{T[1]}, {SPIN}
        s_cbranch_scc1 {dn}
        s_sleep 1
        s_branch {lp}
        """)
        g.L(dn)
        v.free(self.vSa)
        CS = self.CS
        hi = v.alloc(); lo = v.alloc(); ad = v.alloc()
        M(f"""
        s_lshl_b32 s{T[0]}, s{sWf}, 1
        s_add_u32 s{T[0]}, s{T[0]}, s{sWl}
        s_lshl_b32 s{T[0]}, s{T[0]}, 7
        s_add_u32 s{T[0]}, s{T[0]}, {CS}
        v_lshlrev_b32 v{ad}, 2, v{L}
        v_add_u32 v{ad}, s{T[0]}, v{ad}
        s_mov_b64 s[{self.sEx}:{self.sEx+1}], exec
        s_mov_b64 exec, 0xffff
        """)
        for k in range(2):
            M(f"""
            v_cvt_pk_bf16_f32 v{hi}, v{cs+k}, v{cs+k}
            v_and_b32 v{hi}, 0xffff0000, v{hi}
            v_sub_f32 v{lo}, v{cs+k}, v{hi}
            v_cvt_pk_bf16_f32 v{lo}, v{hi}, v{lo}
            ds_write_b32 v{ad}, v{lo} offset:{64*k}
            """)
        I(f"s_mov_b64 exec, s[{self.sEx}:{self.sEx+1}]")
        v.free(hi); v.free(lo); v.free(ad)
        ca = v.alloc()
        M(f"""
        v_and_b32 v{ca}, 31, v{L}
        v_lshlrev_b32 v{ca}, 2, v{ca}
        s_lshl_b32 s{T[0]}, s{sWf}, 8
        s_lshl_b32 s{T[1]}, s{sWl}, 7
        s_add_u32 s{T[0]}, s{T[0]}, s{T[1]}
        s_add_u32 s{T[0]}, s{T[0]}, {CS}
        v_add_u32 v{ca}, s{T[0]}, v{ca}
        """)
        for k in range(1, 4):
            for r in (A[0][0], A[0][1], B[0][0], B[0][1]): I(f"v_mov_b32 v{r+k}, 0")
        g.wait_lg_all()
        g.barrier()
        I(f"ds_read_b32 v{A[0][0]}, v{ca}")
        I(f"v_xor_b32 v{ca}, 128, v{ca}")
        tk = I(f"ds_read_b32 v{A[0][1]}, v{ca}")
        rH = self.rWS
        sHb = s.alloc(); sHb1 = s.alloc()
        M(f"""
        s_lshl_b32 s{T[0]}, s{self.sI}, 2
        s_lshl_b32 s{T[1]}, s{sWl}, 1
        s_add_u32 s{T[0]}, s{T[0]}, s{T[1]}
        s_mul_i32 s{T[0]}, s{T[0]}, 112
        s_lshl_b32 s{T[1]}, s{self.sJ}, 3
        s_add_u32 s{T[0]}, s{T[0]}, s{T[1]}
        s_lshl_b32 s{T[1]}, s{sWf}, 2
        s_add_u32 s{T[0]}, s{T[0]}, s{T[1]}
        s_lshl_b32 s{T[0]}, s{T[0]}, 10
        s_add_u32 s{sHb}, s{T[0]}, {WS_H}
        s_cmp_eq_u32 s{self.sSp}, 0
        s_cselect_b32 s{sHb}, s{sHb}, 0x40000000
        s_lshl_b32 s{T[1]}, s{sWl}, 11
        s_xor_b32 s{T[2]}, s{T[1]}, 2048
        s_add_u32 s{sHb1}, s{sHb}, s{T[2]}
        s_add_u32 s{sHb}, s{sHb}, s{T[1]}
        s_mov_b64 vcc, 0xffffffff
        """)
        g.wait_lg(tk)
        self.stamp("cs_rd")
        g.barrier()
        for ftl in range(2): I(f"v_cndmask_b32 v{A[0][ftl]}, 0, v{A[0][ftl]}, vcc")
        for lt in range(2): I(f"v_cndmask_b32 v{B[0][lt]}, 0, v{stt[lt]}, vcc")
        for lt in range(2):
            for ftl in range(2): mf(g, 0, ftl, lt, False)
        v.free(ca)
        self.stamp("g1_aug")
        self.w2_bg_issue(3, 98304)
        self.w2_bg_read(0)
        self.w2_bg_issue(4, self.TOP)
        self.w2_bg_read(1); self.w2_bg_read(2)
        rsl = [v.alloc(2, 2), v.alloc(2, 2)]
        for lt in range(2):
            I(f"v_mul_f32 v{rsl[lt]}, {hx(-LOG2E)}, v{stt[lt]+1}")
        e = v.alloc(8, 2); z = v.alloc(8, 2); o = [v.alloc(4, 4), v.alloc(4, 4)]
        nst = 0
        for lt in range(2):
            for ftl in range(2):
                self.stamp(f"ep{lt}{ftl}")
                if (lt, ftl) == (1, 0):
                    fa_ = v.alloc()
                    M(f"""
                    v_lshlrev_b32 v{fa_}, 3, v{L}
                    v_add_u32 v{fa_}, {WS_FLN}, v{fa_}
                    """)
                    self.h_ln = self.poll_issue(fa_, n=4, stride=512)
                d = acc[ftl][lt]; R = rsl[lt]
                for pp in range(2):
                    ob = o[nst & 1]
                    x = d + 8 * pp
                    for k in range(4): I(f"v_pk_mul_f32 v[{e+2*k}:{e+2*k+1}], v[{x+2*k}:{x+2*k+1}], v[{R}:{R+1}] op_sel_hi:[1,0]")
                    for k in range(8):
                        I(f"v_exp_f32 v{e+k}, v{e+k}")
                        if k in (2, 6): self.pump()
                    for k in range(4): I(f"v_pk_add_f32 v[{e+2*k}:{e+2*k+1}], v[{e+2*k}:{e+2*k+1}], 1.0 op_sel_hi:[1,0]")
                    for k in range(8):
                        I(f"v_rcp_f32 v{e+k}, v{e+k}")
                        if k in (2, 6): self.pump()
                    for k in range(4): I(f"v_pk_mul_f32 v[{z+2*k}:{z+2*k+1}], v[{x+2*k}:{x+2*k+1}], v[{e+2*k}:{e+2*k+1}]")
                    for k in range(4): I(f"v_cvt_pk_bf16_f32 v{ob+k}, v{z+2*k}, v{z+2*k+1}")
                    self.pump()
                    I(f"s_add_u32 s{T[0]}, s{(sHb, sHb1)[ftl]}, {(lt * 112 + pp) * 1024}")
                    I(f"v_permlane32_swap_b32 v{ob}, v{ob+2}")
                    I(f"v_permlane32_swap_b32 v{ob+1}, v{ob+3}")
                    self.tk_h = I(f"buffer_store_dwordx4 v[{ob}:{ob+3}], v{self.vL16}, s[{rH}:{rH+3}], s{T[0]} offen sc1")
                    nst += 1
        self.drain()
        s.free(sHb); s.free(sHb1)
        for row in vXa + vWa:
            for r in row: v.free(r)
        v.free(sel, 4); v.free(cs, 4)
        for r in self.vXo4 + self.vWo4: v.free(r)
        for bb in A + B:
            for r in bb: v.free(r, 4)
        for row in acc:
            for r in row: v.free(r, 16)
        for r in stt: v.free(r, 4)
        for r in rsl: v.free(r, 2)
        v.free(e, 8); v.free(z, 8); v.free(o[0], 4); v.free(o[1], 4)
        if hasattr(self, 'pf_regs'): v.free(self.pf_regs[0], 4); v.free(self.pf_regs[1])
        if hasattr(self, 'touch_regs'): v.free(self.touch_regs[0]); v.free(self.touch_regs[1])
        self.stamp("g1_epi")
        if self.stop == 'g1':
            g.wait_all(); g.barrier()
            self.set_flag(WS_FH, self.sLb)
            g.wait_all()

    def cmul(self, d, x, z, t):
        self.I(f"v_pk_mul_f32 v[{t}:{t+1}], v[{x}:{x+1}], v[{z}:{z+1}] op_sel_hi:[1,0]")
        self.I(f"v_pk_fma_f32 v[{d}:{d+1}], v[{x}:{x+1}], v[{z}:{z+1}], v[{t}:{t+1}] op_sel:[1,1,0] op_sel_hi:[0,1,1] neg_lo:[1,0,0]")

    def kgen(self):
        g = self.g; I = self.I; M = self.M; v = self.v; T = self.sT; s = self.s
        L = self.vLane; kp = self.kp
        g.wait_lg_all()
        g.barrier()
        self.stamp("kg_bar")
        self.poll_check(self.h_ln)
        self.stamp("kg_poll")
        self.uu = [v.alloc(4, 4), v.alloc(4, 4)]
        ga = v.alloc()
        M(f"""
        v_lshlrev_b32 v{ga}, 13, v0
        s_lshl_b32 s{T[0]}, s{self.sD0}, 4
        """)
        I(f"buffer_load_dwordx4 v[{self.uu[0]}:{self.uu[0]+3}], v{ga}, s[{self.rWS}:{self.rWS+3}], s{T[0]} offen sc1")
        self.tk_u = I(f"buffer_load_dwordx4 v[{self.uu[1]}:{self.uu[1]+3}], v{ga}, s[{self.rWS}:{self.rWS+3}], s{T[0]} offen offset:16 sc1")
        v.free(ga)
        self.w2_bg_read(3)
        self.w2_bg_issue(5, 98304, after=3)
        self.w2_bg_read(4)
        self.w2_bg_issue(6, self.TOP, after=4)
        self.wvm(self.tk_kp)
        P = lambda: v.alloc(2, 2)
        dt = v.alloc(); arl = v.alloc(); air = v.alloc(); t0 = v.alloc(); t1 = v.alloc(); t2 = v.alloc()
        W = P(); dB = P(); tt = P(); tt2 = P()
        for r in kp: I(f"v_lshlrev_b32 v{r}, 16, v{r}")
        M(f"""
        v_mul_f32 v{dt}, {hx(LOG2E)}, v{kp[6]}
        v_exp_f32 v{dt}, v{dt}
        v_cvt_pk_bf16_f32 v{dt}, v{dt}, v{dt}
        v_and_b32 v{dt}, 0xffff0000, v{dt}
        v_mul_f32 v{arl}, v{dt}, v{kp[0]}
        v_mul_f32 v{air}, v{dt}, v{kp[1]}
        v_mul_f32 v{arl}, {hx(LOG2E)}, v{arl}
        v_mul_f32 v{air}, {hx(1/(2*math.pi))}, v{air}
        v_mul_f32 v{dB}, v{dt}, v{kp[2]}
        v_mul_f32 v{dB+1}, v{dt}, v{kp[3]}
        v_mov_b32 v{tt2}, v{kp[4]}
        v_mov_b32 v{tt2+1}, v{kp[5]}
        """)
        self.cmul(W, tt2, dB, tt)
        self.vDsk = kp[7]
        def zdirect(z, mult):
            m = "1.0" if mult == 1 else hx(float(mult))
            M(f"""
            v_mul_f32 v{t0}, {m}, v{arl}
            v_mul_f32 v{t1}, {m}, v{air}
            v_exp_f32 v{t0}, v{t0}
            v_fract_f32 v{t1}, v{t1}
            v_cos_f32 v{t2}, v{t1}
            v_sin_f32 v{t1}, v{t1}
            v_mul_f32 v{z}, v{t0}, v{t2}
            v_mul_f32 v{z+1}, v{t0}, v{t1}
            """)
        z1 = P(); z2 = P(); z4 = P(); z8 = P(); z256 = P()
        zdirect(z8, 8); zdirect(z1, 1); zdirect(z256, 256)
        self.cmul(z2, z1, z1, tt); self.cmul(z4, z2, z2, tt)
        self.stamp("kg_setup")
        wa = [self.kwa0] + [v.alloc() for _ in range(15)]
        for k in range(1, 16): I(f"v_xor_b32 v{wa[k]}, {k << 4}, v{wa[0]}")
        z16 = P()
        self.cmul(z16, z8, z8, tt)
        def cm(lst, d, x, z, t):
            lst.append(f"v_pk_mul_f32 v[{t}:{t+1}], v[{x}:{x+1}], v[{z}:{z+1}] op_sel_hi:[1,0]")
            lst.append(f"v_pk_fma_f32 v[{d}:{d+1}], v[{x}:{x+1}], v[{z}:{z+1}], v[{t}:{t+1}] op_sel:[1,1,0] op_sel_hi:[0,1,1] neg_lo:[1,0,0]")
        def put(lst, val, row, isY, r):
            lst.append(f"v_cvt_pk_bf16_f32 v{r}, v{val}, {'-' if isY else ''}v{val+1}")
            lst.append(f"ds_write_b32 v{wa[row & 15]}, v{r} offset:{(self.YOFF if isY else self.XOFF) + row * 512}")
        pk = [v.alloc() for _ in range(6)]
        streams = []
        ye = [P(), P()]; yo = [P(), P()]; te = P(); to = P(); tx = P()
        Se = []; So = []; Sx = []
        Se.append(f"v_mov_b32 v{ye[0]}, 1.0"); Se.append(f"v_mov_b32 v{ye[0]+1}, 0")
        put(Se, ye[0], 0, True, pk[0])
        put(So, z8, 1, True, pk[2])
        cure = ye[0]; curo = z8
        for j in range(2, 32, 2):
            de = ye[(j // 2) & 1]
            if j == 2: Se += [f"v_mov_b32 v{de}, v{z16}", f"v_mov_b32 v{de+1}, v{z16+1}"]
            else: cm(Se, de, cure, z16, te)
            cure = de
            put(Se, de, j, True, pk[(j // 2) & 1])
            do = yo[(j // 2) & 1]
            cm(So, do, curo, z16, to); curo = do
            put(So, do, j + 1, True, pk[2 + ((j // 2) & 1)])
        xa_ = P(); xb_ = P(); xc = P(); c256 = P(); c2 = P()
        xn = [0]
        def xput(val, row):
            put(Sx, val, row, False, pk[4 + (xn[0] & 1)]); xn[0] += 1
        xput(W, 0)
        prev = W
        for e_ in range(1, 8):
            dst = xa_ if e_ & 1 else xb_
            cm(Sx, dst, prev, z1, tx); xput(dst, e_); prev = dst
        cm(Sx, c256, W, z256, tx); xput(c256, 8)
        prev = c256
        for e_ in range(1, 4):
            dst = xa_ if e_ & 1 else xb_
            cm(Sx, dst, prev, z2, tx); xput(dst, 8 + e_); prev = dst
        prev = c256
        for idx, row in enumerate([12, 13, 14, 15, 20, 21, 22]):
            dst = c2 if (idx & 1) == 0 else c256
            cm(Sx, dst, prev, z256, tx); xput(dst, row); prev = dst
            if idx < 2:
                cm(Sx, xc, dst, z4, tx); xput(xc, 16 + idx)
        qs = [deque(Se), deque(So), deque(Sx)]
        n_ = 0
        while any(qs):
            for q_ in qs:
                if q_: I(q_.popleft()); n_ += 1
            if n_ % 9 < 3: self.pump()
        self.stamp("kg_chain")
        self.drain()
        self.stamp("kg_drain")
        for r in [z1, z2, z4, z8, z16, z256, xa_, xb_, xc, tx, te, to, c256, c2, W, dB, tt, tt2] + ye + yo: v.free(r, 2)
        for r in wa + pk + [dt, arl, air] + kp[:7]: v.free(r)
        R = [self.kR0] + [v.alloc() for _ in range(3)]; RX = [v.alloc() for _ in range(4)]
        for k in range(1, 4): I(f"v_xor_b32 v{R[k]}, {64*k}, v{R[0]}")
        I(f"s_lshl_b32 s{T[1]}, s{self.sHh}, 13")
        for k in range(4): I(f"v_add_u32 v{RX[k]}, s{T[1]}, v{R[k]}")
        vb = self.kvb; vs = self.kvs; gi = v.alloc()
        g.wait_lg_all()
        g.barrier()
        self.stamp("kg_gen")
        fa = [v.alloc(4, 4) for _ in range(8)]; fb = [[v.alloc(4, 4) for _ in range(8)] for _ in range(2)]
        kacc = [v.alloc(4, 4), v.alloc(4, 4)]
        tks = []
        def kmf(sd):
            g.wait_lg(tks[sd])
            for ct in range(2):
                c_ = "0" if sd == 0 else f"v[{kacc[ct]}:{kacc[ct]+3}]"
                I(f"v_mfma_f32_16x16x32_bf16 v[{kacc[ct]}:{kacc[ct]+3}], v[{fa[sd]}:{fa[sd]+3}], v[{fb[ct][sd]}:{fb[ct][sd]+3}], {c_}")
        for st in range(8):
            I(f"ds_read_b128 v[{fa[st]}:{fa[st]+3}], v{RX[st & 3]} offset:{self.XOFF + (st >> 2) * 256}")
            I(f"ds_read_b128 v[{fb[0][st]}:{fb[0][st]+3}], v{R[st & 3]} offset:{self.YOFF + (st >> 2) * 256}")
            tks.append(I(f"ds_read_b128 v[{fb[1][st]}:{fb[1][st]+3}], v{R[st & 3]} offset:{self.YOFF + 8192 + (st >> 2) * 256}"))
            if st >= 3: kmf(st - 3); self.pump()
        for sd in range(5, 8): kmf(sd); self.pump()
        for r in fa + fb[0] + fb[1]: v.free(r, 4)
        for r in R + RX: v.free(r)
        Ex = self.sEx
        M(f"""
        s_mov_b64 s[{Ex}:{Ex+1}], exec
        s_cmp_eq_u32 s{self.sHh}, 0
        s_cselect_b64 exec, -1, 0xffffffff
        """)
        tp = [t0, t1, t2, gi]
        for r in range(4):
            for ct in range(2):
                if r >= 2:
                    I(f"s_cmp_eq_u32 s{self.sHh}, 0")
                    I(f"s_cselect_b64 exec, -1, {'0x1ffff' if (r, ct) == (2, 0) else '0xffff'}")
                tr_ = tp[(2 * r + ct) & 3]
                I(f"v_cvt_pk_bf16_f32 v{tr_}, v{kacc[ct]+r}, v{kacc[ct]+r}")
                I(f"ds_write_b16 v{vb}, v{tr_} offset:{ct*256}")
            if r < 3:
                I(f"s_mov_b64 exec, s[{Ex}:{Ex+1}]")
                I(f"v_add_u32 v{vb}, v{vb}, v{vs}")
                if r == 0:
                    I(f"s_cmp_eq_u32 s{self.sHh}, 0")
                    I(f"s_cselect_b64 exec, -1, 0xffffffff")
        M(f"""
        s_mov_b64 exec, 1
        s_mul_i32 s{T[0]}, s{self.sCh}, {self.TABCH}
        s_add_u32 s{T[0]}, s{T[0]}, {self.TAB}
        v_mov_b32 v{t0}, s{T[0]}
        v_mov_b32 v{t1}, 0
        ds_write_b16 v{t0}, v{t1}
        s_mov_b64 exec, s[{Ex}:{Ex+1}]
        """)
        v.free(kacc[0], 4); v.free(kacc[1], 4); v.free(vb); v.free(vs); v.free(gi)
        self.drain()
        self.wvm(self.tk_h)
        g.wait_lg_all()
        g.barrier()
        self.set_flag(WS_FH, self.sLb)
        self.stamp("kg_tab")
        wa0 = v.alloc()
        I(f"v_lshlrev_b32 v{wa0}, 4, v0")
        xa = self.xa
        E = [v.alloc(12), v.alloc(12)]; Dd = [v.alloc(8, 2), v.alloc(8, 2)]; O = [v.alloc(8, 2), v.alloc(8, 2)]
        tkc = []
        for ch in range(2):
            for k in range(1, 12): tk = I(f"ds_read_u16 v{E[ch] + k}, v{xa[k]} offset:{ch * self.TABCH}")
            tkc.append(tk)
        d = v.alloc(8, 2); o = v.alloc(8, 2); tw = self.ktw; e4 = v.alloc(4)
        for idx in range(4): tkt = I(f"ds_read_u16 v{e4+idx}, v{self.kta[idx]}")
        wa_ = v.alloc(); zz = v.alloc()
        M(f"""
        v_add_u32 v{wa_}, {self.U + 512}, v{wa0}
        s_mul_i32 s{T[0]}, s{self.sCh}, {self.UCH}
        s_lshl_b32 s{T[1]}, s{self.sHh}, 8
        s_add_u32 s{T[0]}, s{T[0]}, s{T[1]}
        s_add_u32 s{T[0]}, s{T[0]}, {self.U}
        v_lshlrev_b32 v{zz}, 2, v{L}
        """)
        self.wvm(self.tk_u)
        tku_ = [I(f"ds_write_b128 v{wa_}, v[{self.uu[0]}:{self.uu[0]+3}]"), I(f"ds_write_b128 v{wa_}, v[{self.uu[1]}:{self.uu[1]+3}] offset:{self.UCH}")]
        I(f"v_add_u32 v{wa_}, s{T[0]}, v{zz}")
        I(f"v_mov_b32 v{zz}, 0")
        I(f"ds_write_b32 v{wa_}, v{zz}")
        v.free(wa_); v.free(zz); v.free(self.uu[0], 4); v.free(self.uu[1], 4)
        for ch in range(2):
            g.wait_lg(tkc[ch])
            e = E[ch]; dd = Dd[ch]
            I(f"v_lshlrev_b32 v{dd}, 16, v{e+1}")
            for m in range(1, 6): I(f"v_lshl_or_b32 v{dd+m}, v{e+2*m+1}, 16, v{e+2*m}")
            self.kr_write(dd, O[ch], wa0, ch * self.KRCH)
        for k in range(3, 8): I(f"v_mov_b32 v{d+k}, 0")
        g.wait_lg(tkt)
        M(f"""
        v_lshlrev_b32 v{d}, 16, v{e4}
        v_lshl_or_b32 v{d+1}, v{e4+2}, 16, v{e4+1}
        v_mov_b32 v{d+2}, v{e4+3}
        s_mov_b64 s[{self.sEx}:{self.sEx+1}], exec
        s_mov_b64 exec, 0x3f
        """)
        self.kr_write(d, o, tw, 0)
        I(f"s_mov_b64 exec, s[{self.sEx}:{self.sEx+1}]")
        for r, n in ((E[0], 12), (E[1], 12), (Dd[0], 8), (Dd[1], 8), (O[0], 8), (O[1], 8), (d, 8), (o, 8), (e4, 4)): v.free(r, n)
        for r in xa + self.kta + [tw, wa0, t0, t1, t2]: v.free(r)

    def kr_write(self, d, o, wa, off):
        I = self.I
        I(f"ds_write_b128 v{wa}, v[{d+2}:{d+5}] offset:{off}")
        for m in range(4): I(f"v_alignbit_b32 v{o+m}, v{d+2+m}, v{d+1+m}, 16")
        I(f"ds_write_b128 v{wa}, v[{o}:{o+3}] offset:{off + self.KRP}")
        for m in range(4): I(f"v_alignbit_b32 v{o+4+m}, v{d+1+m}, v{d+m}, 16")
        I(f"ds_write_b128 v{wa}, v[{o+4}:{o+7}] offset:{off + 3 * self.KRP}")
        for m in range(4): I(f"v_mov_b32 v{o+m}, v{d+1+m}")
        I(f"ds_write_b128 v{wa}, v[{o}:{o+3}] offset:{off + 2 * self.KRP}")

    def conv(self):
        g = self.g; I = self.I; M = self.M; v = self.v; T = self.sT; s = self.s; L = self.vLane
        vKA = self.vKA; vUB = self.vUB; t0 = v.alloc(); t1 = v.alloc(); t2 = self.vSo
        g.wait_lg_all()
        g.barrier()
        self.stamp("kg_done")
        for r in self.vW2o4: v.free(r)
        FA = [[v.alloc(4, 4) for _ in range(8)] for _ in range(2)]
        FB = [[v.alloc(4, 4) for _ in range(8)] for _ in range(2)]
        acc = [v.alloc(4, 4) for _ in range(8)]
        def rd(u, k, buf):
            a = FA[buf][k]; b = FB[buf][k]
            return [f"ds_read_b64 v[{a}:{a+1}], v{vKA} offset:{64 * (59 - 8 * k - u)}",
                    f"ds_read_b64 v[{a+2}:{a+3}], v{vKA} offset:{64 * (59 - 8 * k - u) + 8}",
                    f"ds_read_b128 v[{b}:{b+3}], v{vUB} offset:{64 * (8 * k + 3 - u)}"]
        self.w2_bg_read(5); self.w2_bg_read(6)
        tk0 = []
        for k in range(8):
            for t in rd(0, k, 0): tk = I(t)
            tk0.append(tk)
        for u in range(4):
            buf = u & 1
            pend = deque()
            if u < 3:
                for k in range(8): pend.extend(rd(u + 1, k, buf ^ 1))
            else:
                for r in FA[0] + FB[0]: v.free(r, 4)
                self.g2_prepare()
            ntk = []
            nm = 0
            for tau in range(8):
                g.wait_lg(tk0[tau])
                for k in range(tau + 1):
                    first = (u == 0 and k == 0)
                    d = acc[tau]
                    c_ = "0" if first else f"v[{d}:{d+3}]"
                    I(f"v_mfma_f32_16x16x32_bf16 v[{d}:{d+3}], v[{FA[buf][k]}:{FA[buf][k]+3}], v[{FB[buf][tau-k]}:{FB[buf][tau-k]+3}], {c_}")
                    nm += 1
                    if pend:
                        t = I(pend.popleft())
                        if len(pend) % 3 == 0: ntk.append(t)
                    elif nm % (4 if u == 3 else 2) == 0: self.pump()
            if u == 1: self.g2_poll_issue()
            tk0 = ntk
            self.stamp(f"cv{u}")
        for r in FA[1] + FB[1]: v.free(r, 4)
        self.stamp("conv_mfma")
        lab = g.label("L_sw")
        g.I(f"s_cmp_eq_u32 s{self.sHh}, 0")
        g.I(f"s_cbranch_scc1 {lab}")
        for k in range(4):
            for r in range(4): g.I(f"v_swap_b32 v{acc[k]+r}, v{acc[k+4]+r}")
        g.L(lab)
        ea = v.alloc(); eb = v.alloc()
        M(f"""
        s_lshl_b32 s{T[0]}, s{self.sV}, 12
        s_add_u32 s{T[0]}, s{T[0]}, {self.EX}
        v_add_u32 v{ea}, s{T[0]}, v{self.vL16}
        """)
        for k in range(4): I(f"ds_write_b128 v{ea}, v[{acc[4+k]}:{acc[4+k]+3}] offset:{k*1024}")
        M(f"""
        s_xor_b32 s{T[0]}, s{self.sV}, 1
        s_lshl_b32 s{T[0]}, s{T[0]}, 12
        s_add_u32 s{T[0]}, s{T[0]}, {self.EX}
        v_add_u32 v{eb}, s{T[0]}, v{self.vL16}
        """)
        ua = v.alloc(); uv = [v.alloc(2, 2) for _ in range(4)]
        M(f"""
        s_mul_i32 s{T[0]}, s{self.sCh}, {self.UCH}
        s_lshl_b32 s{T[1]}, s{self.sHh}, 11
        s_add_u32 s{T[0]}, s{T[0]}, s{T[1]}
        s_add_u32 s{T[0]}, s{T[0]}, {self.U + 512}
        v_add_u32 v{ua}, s{T[0]}, v{t2}
        """)
        for k in range(4): I(f"ds_read_b64 v[{uv[k]}:{uv[k]+1}], v{ua} offset:{k*512}")
        self.pump(4)
        g.wait_lg_all()
        g.barrier()
        pr = [v.alloc(4, 4) for _ in range(4)]
        for k in range(4): tk = I(f"ds_read_b128 v[{pr[k]}:{pr[k]+3}], v{eb} offset:{k*1024}")
        sS = self.s2.alloc()
        M(f"""
        s_lshl_b32 s{sS}, s{self.sD}, 12
        s_lshl_b32 s{T[1]}, s{self.sHh}, 11
        s_add_u32 s{sS}, s{sS}, s{T[1]}
        s_add_u32 s{sS}, s{sS}, {WS_S}
        """)
        self.pump(4)
        g.wait_lg(tk)
        x4 = v.alloc(4); so = [v.alloc(2, 2), v.alloc(2, 2)]
        D = self.vDsk
        for k in range(4):
            y = acc[k]; p = pr[k]; o = so[k & 1]
            M(f"""
            v_add_f32 v{y}, v{y}, v{p}
            v_add_f32 v{y+1}, v{y+1}, v{p+1}
            v_add_f32 v{y+2}, v{y+2}, v{p+2}
            v_add_f32 v{y+3}, v{y+3}, v{p+3}
            v_lshlrev_b32 v{x4}, 16, v{uv[k]}
            v_and_b32 v{x4+1}, 0xffff0000, v{uv[k]}
            v_lshlrev_b32 v{x4+2}, 16, v{uv[k]+1}
            v_and_b32 v{x4+3}, 0xffff0000, v{uv[k]+1}
            v_fmac_f32 v{y}, v{x4}, v{D}
            v_fmac_f32 v{y+1}, v{x4+1}, v{D}
            v_fmac_f32 v{y+2}, v{x4+2}, v{D}
            v_fmac_f32 v{y+3}, v{x4+3}, v{D}
            v_cvt_pk_bf16_f32 v{o}, v{y}, v{y+1}
            v_cvt_pk_bf16_f32 v{o+1}, v{y+2}, v{y+3}
            v_min_u32 v{o}, -2, v{o}
            v_min_u32 v{o+1}, -2, v{o+1}
            """)
            self.tk_s = I(f"buffer_store_dwordx2 v[{o}:{o+1}], v{t2}, s[{self.rWS}:{self.rWS+3}], s{sS} offen offset:{k*512} sc1")
            self.pump(2)
        self.drain()
        for r in acc + pr: v.free(r, 4)
        for r in uv + so: v.free(r, 2)
        v.free(x4, 4)
        for r in (vKA, vUB, t0, t1, t2, ea, eb, ua, D): v.free(r)
        self.stamp("conv_done")
        if self.stop == 'cv':
            g.wait_all(); g.barrier()

    def g2_poll_issue(self):
        M = self.M; v = self.v; T = self.sT; L = self.vLane
        fa = v.alloc()
        M(f"""
        v_and_b32 v{fa}, 15, v{L}
        v_lshlrev_b32 v{fa}, 3, v{fa}
        s_lshr_b32 s{T[0]}, s{self.sM}, 1
        s_lshl_b32 s{T[0]}, s{T[0]}, 7
        s_add_u32 s{T[0]}, s{T[0]}, {WS_FH}
        v_add_u32 v{fa}, s{T[0]}, v{fa}
        """)
        self.h_h = self.poll_issue(fa)

    def g2_prepare(self):
        g = self.g; I = self.I; M = self.M; v = self.v; T = self.sT; s2 = self.s2; L = self.vLane; sV = self.sV
        self.drain()
        self.poll_check(self.h_h)
        self.D2 = D = self.opt.get('D2', 8)
        self.hb = hb = [[v.alloc(4, 4) for _ in range(2)] for _ in range(D)]
        self.sHs = sHs = [s2.alloc(), s2.alloc()]
        self.sHg = s2.alloc(); self.sHc = [s2.alloc(), s2.alloc()]
        M(f"""
        s_lshl_b32 s{T[0]}, s{self.sM}, 1
        s_and_b32 s{T[1]}, s{sV}, 1
        s_add_u32 s{T[2]}, s{T[0]}, s{T[1]}
        s_xor_b32 s{T[1]}, s{T[1]}, 1
        s_add_u32 s{T[3]}, s{T[0]}, s{T[1]}
        s_mul_i32 s{T[2]}, s{T[2]}, 112
        s_mul_i32 s{T[3]}, s{T[3]}, 112
        s_mul_i32 s{T[0]}, s{sV}, 28
        s_add_u32 s{T[2]}, s{T[2]}, s{T[0]}
        s_add_u32 s{T[3]}, s{T[3]}, s{T[0]}
        s_lshl_b32 s{T[2]}, s{T[2]}, 10
        s_lshl_b32 s{T[3]}, s{T[3]}, 10
        s_add_u32 s{sHs[0]}, s{T[2]}, {WS_H}
        s_add_u32 s{sHs[1]}, s{T[3]}, {WS_H}
        """)
        self.tkh = {}
        for st in range(D):
            for ls in range(2):
                self.bg.append(lambda st=st, ls=ls: self.hload(st, ls))
        self.xt = xt = [v.alloc(4, 4), v.alloc(4, 4)]; self.vo = vo = v.alloc(); self.vo2 = vo2 = v.alloc()
        self.sXo = sXo = s2.alloc()
        tmp = v.alloc()
        def xl():
            M(f"""
            v_lshrrev_b32 v{vo}, 3, v{L}
            v_lshlrev_b32 v{vo2}, 12, v{vo}
            v_lshlrev_b32 v{vo}, 10, v{vo}
            v_and_b32 v{tmp}, 7, v{L}
            v_lshlrev_b32 v{tmp}, 4, v{tmp}
            v_add_u32 v{vo}, v{vo}, v{tmp}
            v_add_u32 v{vo2}, v{vo2}, v{tmp}
            s_lshl_b32 s{sXo}, s{self.sM}, 16
            s_lshl_b32 s{self.sB[0]}, s{sV}, 14
            s_add_u32 s{sXo}, s{sXo}, s{self.sB[0]}
            s_lshl_b32 s{self.sB[0]}, s{self.sN}, 7
            s_add_u32 s{sXo}, s{sXo}, s{self.sB[0]}
            s_add_u32 s{self.sB[0]}, s{sXo}, 8192
            """)
            I(f"buffer_load_dwordx4 v[{xt[0]}:{xt[0]+3}], v{vo}, s[{self.rX}:{self.rX+3}], s{sXo} offen")
            self.tk_x = I(f"buffer_load_dwordx4 v[{xt[1]}:{xt[1]+3}], v{vo}, s[{self.rX}:{self.rX+3}], s{self.sB[0]} offen")
            v.free(tmp)
        self.bg.append(xl)

    def hload(self, st, ls):
        r = self.hb[st % self.D2][ls]
        G_, C = self.sHg, self.sHc
        if st % 4 == 0 and ls == 0:
            if st == 0: self.I(f"s_mov_b32 s{G_}, s{self.sRot2}")
            else:
                self.I(f"s_add_u32 s{G_}, s{G_}, 1")
                self.I(f"s_cmp_eq_u32 s{G_}, 7")
                self.I(f"s_cselect_b32 s{G_}, 0, s{G_}")
            self.I(f"s_lshl_b32 s{C[0]}, s{G_}, 12")
            self.I(f"s_add_u32 s{C[1]}, s{C[0]}, s{self.sHs[1]}")
            self.I(f"s_add_u32 s{C[0]}, s{C[0]}, s{self.sHs[0]}")
        self.tkh[(st, ls)] = self.I(f"buffer_load_dwordx4 v[{r}:{r+3}], v{self.vL16}, s[{self.rWS}:{self.rWS+3}], s{C[ls]} offen offset:{(st % 4) * 1024} sc1")

    def gemm2(self):
        g = self.g; I = self.I; M = self.M; v = self.v; T = self.sT; s = self.s; L = self.vLane
        RED = 0; XT = 49152; ST_ = 57344
        sV = self.sV; D = self.D2; hb = self.hb; tkh = self.tkh
        xt, vo, vo2, sXo = self.xt, self.vo, self.vo2, self.sXo
        self.rOut = self.s2.alloc(4, 4)
        acc = [v.alloc(16, 4) for _ in range(4)]
        xw = [v.alloc(), v.alloc()]; t0 = v.alloc(); t1 = v.alloc(); sw = v.alloc(); ra = v.alloc(); rw = [v.alloc() for _ in range(3)]
        sa = v.alloc(); xq = [v.alloc() for _ in range(4)]; rsv = v.alloc(4, 4); rsa = v.alloc()
        B = self.sB
        vq = deque()
        def add(text):
            for ln in text.strip().split('\n'):
                ln = ln.strip()
                if ln: vq.append(ln)
        p = self.pOut; r = self.rOut
        add(f"""
        s_mov_b32 s{r}, s{p}
        s_and_b32 s{r+1}, s{p+1}, 0xffff
        s_mov_b32 s{r+2}, {2 << 20}
        s_mov_b32 s{r+3}, 0x20000
        v_lshrrev_b32 v{t0}, 3, v{L}
        v_lshlrev_b32 v{t0}, 7, v{t0}
        v_lshrrev_b32 v{t1}, 4, v{L}
        v_and_b32 v{xw[1]}, 7, v{L}
        v_xor_b32 v{t1}, v{t1}, v{xw[1]}
        v_lshlrev_b32 v{t1}, 4, v{t1}
        s_lshl_b32 s{B[0]}, s{sV}, 11
        s_add_u32 s{B[0]}, s{B[0]}, {XT}
        v_add3_u32 v{xw[0]}, v{t0}, v{t1}, s{B[0]}
        v_xor_b32 v{xw[1]}, 64, v{xw[0]}
        v_add_u32 v{xw[1]}, 1024, v{xw[1]}
        v_lshrrev_b32 v{t1}, 4, v{L}
        v_and_b32 v{t1}, 1, v{t1}
        v_lshlrev_b32 v{t1}, 2, v{t1}
        v_and_b32 v{sw}, 7, v{L}
        v_xor_b32 v{t1}, v{t1}, v{sw}
        v_lshlrev_b32 v{t1}, 4, v{t1}
        s_lshl_b32 s{B[0]}, s{sV}, 11
        s_add_u32 s{B[0]}, s{B[0]}, {ST_}
        v_add3_u32 v{sw}, v{t0}, v{t1}, s{B[0]}
        v_and_b32 v{rsa}, 31, v{L}
        v_lshlrev_b32 v{rsa}, 4, v{rsa}
        s_lshl_b32 s{B[0]}, s{self.sM}, 10
        s_and_b32 s{B[1]}, s{sV}, 1
        s_lshl_b32 s{B[1]}, s{B[1]}, 9
        s_add_u32 s{B[0]}, s{B[0]}, s{B[1]}
        s_add_u32 s{B[0]}, s{B[0]}, {WS_ST}
        v_add_u32 v{rsa}, s{B[0]}, v{rsa}
        """)
        vq2 = deque()
        def add2(text):
            for ln in text.strip().split('\n'):
                ln = ln.strip()
                if ln: vq2.append(ln)
        for k in range(1, 4):
            add2(f"""
            s_xor_b32 s{B[0]}, s{sV}, {k}
            s_mul_i32 s{B[0]}, s{B[0]}, 12288
            s_add_u32 s{B[0]}, s{B[0]}, {RED + (k - 1) * 4096}
            v_add_u32 v{rw[k-1]}, s{B[0]}, v{self.vL16}
            """)
        add2(f"""
        v_lshrrev_b32 v{t0}, 5, v{L}
        v_lshlrev_b32 v{t0}, 2, v{t0}
        v_lshrrev_b32 v{t1}, 2, v{L}
        v_and_b32 v{t1}, 3, v{t1}
        v_add_u32 v{t0}, v{t0}, v{t1}
        v_lshlrev_b32 v{sa}, 7, v{t0}
        v_lshrrev_b32 v{t1}, 1, v{t1}
        s_and_b32 s{B[0]}, s{sV}, 1
        v_xor_b32 v{t1}, s{B[0]}, v{t1}
        v_lshlrev_b32 v{t1}, 6, v{t1}
        v_add_u32 v{sa}, v{sa}, v{t1}
        v_lshrrev_b32 v{t1}, 4, v{L}
        v_and_b32 v{t1}, 1, v{t1}
        v_lshlrev_b32 v{t1}, 5, v{t1}
        v_add_u32 v{sa}, v{sa}, v{t1}
        v_and_b32 v{t1}, 3, v{L}
        v_lshlrev_b32 v{t1}, 3, v{t1}
        v_add_u32 v{sa}, v{sa}, v{t1}
        s_lshr_b32 s{B[1]}, s{sV}, 1
        s_lshl_b32 s{B[1]}, s{B[1]}, 12
        s_add_u32 s{B[1]}, s{B[1]}, {ST_}
        v_add_u32 v{sa}, s{B[1]}, v{sa}
        v_and_b32 v{t0}, 31, v{L}
        v_lshrrev_b32 v{t1}, 1, v{t0}
        v_and_b32 v{t1}, 7, v{t1}
        s_lshr_b32 s{B[1]}, s{sV}, 1
        s_lshl_b32 s{B[1]}, s{B[1]}, 2
        v_xor_b32 v{t1}, s{B[1]}, v{t1}
        v_lshlrev_b32 v{t1}, 4, v{t1}
        v_lshlrev_b32 v{t0}, 7, v{t0}
        v_add_u32 v{xq[0]}, v{t0}, v{t1}
        v_lshrrev_b32 v{t0}, 5, v{L}
        v_lshlrev_b32 v{t0}, 3, v{t0}
        v_add_u32 v{xq[0]}, v{xq[0]}, v{t0}
        s_and_b32 s{B[0]}, s{sV}, 1
        s_lshl_b32 s{B[0]}, s{B[0]}, 12
        s_add_u32 s{B[0]}, s{B[0]}, {XT}
        v_add_u32 v{xq[0]}, s{B[0]}, v{xq[0]}
        v_xor_b32 v{xq[1]}, 16, v{xq[0]}
        v_xor_b32 v{xq[2]}, 32, v{xq[0]}
        v_xor_b32 v{xq[3]}, 48, v{xq[0]}
        s_mul_i32 s{B[0]}, s{sV}, 12288
        s_add_u32 s{B[0]}, s{B[0]}, {RED}
        v_add_u32 v{ra}, s{B[0]}, v{self.vL16}
        """)
        sSt = [self.s2.alloc(), self.s2.alloc()]
        add2(f"""
        s_lshl_b32 s{sSt[0]}, s{self.sN}, 18
        s_lshl_b32 s{B[0]}, s{sV}, 16
        s_add_u32 s{sSt[0]}, s{sSt[0]}, s{B[0]}
        s_lshl_b32 s{B[0]}, s{self.sM}, 7
        s_add_u32 s{sSt[0]}, s{sSt[0]}, s{B[0]}
        s_add_u32 s{sSt[0]}, s{sSt[0]}, {WS_S}
        s_add_u32 s{sSt[1]}, s{sSt[0]}, 32768
        """)
        g.wait_lg_all()
        g.barrier()
        self.stamp("g2_start")
        XST = self.opt.get('x_step', 9); SLD = self.opt.get('sld_step', 20)
        def sload():
            I(f"buffer_load_dwordx4 v[{xt[0]}:{xt[0]+3}], v{vo2}, s[{self.rWS}:{self.rWS+3}], s{sSt[0]} offen sc1")
            return I(f"buffer_load_dwordx4 v[{xt[1]}:{xt[1]+3}], v{vo2}, s[{self.rWS}:{self.rWS+3}], s{sSt[1]} offen sc1")
        for st in range(28):
            self.wvm(tkh[(st, 1)])
            k = 0
            for ls in range(2):
                for ds_ in range(2):
                    d = acc[2 * ds_ + ls]; a = self.aW2 + st * 8 + ds_ * 4; b = hb[st % D][ls]
                    c_ = "0" if st == 0 else f"v[{d}:{d+15}]"
                    I(f"v_mfma_f32_32x32x16_bf16 v[{d}:{d+15}], a[{a}:{a+3}], v[{b}:{b+3}], {c_}")
                    k += 1
                    if st + D < 28 and ds_ == 1: self.hload(st + D, ls)
                    q_ = vq if vq else vq2
                    for _ in range(3):
                        if q_: I(q_.popleft())
            if st == XST:
                assert not vq
                self.wvm(self.tk_x)
                for e in range(2): I(f"ds_write_b128 v{xw[e]}, v[{xt[e]}:{xt[e]+3}]")
                tk_rs = I(f"buffer_load_dwordx4 v[{rsv}:{rsv+3}], v{rsa}, s[{self.rWS}:{self.rWS+3}], 0 offen sc1")
            if st == SLD:
                assert not vq2
                g.wait_lg_all()
                tk_st = sload()
        self.stamp("g2_loop")
        for row in hb:
            for r_ in row: v.free(r_, 4)
        if self.opt.get('dump_acc'):
            la = v.alloc()
            I(f"v_lshlrev_b32 v{la}, 2, v{L}")
            I(f"s_lshl_b32 s{T[0]}, s2, 2"); I(f"s_add_u32 s{T[0]}, s{T[0]}, s{sV}"); I(f"s_lshl_b32 s{T[0]}, s{T[0]}, 14")
            I(f"s_add_u32 s{T[0]}, s{T[0]}, {32 << 20}")
            for k in range(4):
                for r_ in range(16):
                    I(f"buffer_store_dword v{acc[k]+r_}, v{la}, s[{self.rWS}:{self.rWS+3}], s{T[0]} offen offset:{(k*16 + r_)*256 % 4096}")
                    if (k * 16 + r_) % 16 == 15: I(f"s_add_u32 s{T[0]}, s{T[0]}, 4096")
                    if r_ % 8 == 7: g.wait_vm_all()
            v.free(la)
        for k in range(1, 4):
            for q in range(4): I(f"ds_write_b128 v{rw[k-1]}, v[{acc[k]+4*q}:{acc[k]+4*q+3}] offset:{q*1024}")
        lp = g.label("L_sq"); dn = g.label("L_sr")
        P = self.sP
        def scmp():
            g.I(f"v_cmp_eq_u32 vcc, -1, v{xt[0]}")
            for rr in (xt[0] + 1, xt[0] + 2, xt[0] + 3, xt[1], xt[1] + 1, xt[1] + 2, xt[1] + 3):
                g.I(f"v_cmp_eq_u32 s[{P}:{P+1}], -1, v{rr}")
                g.I(f"s_or_b64 vcc, vcc, s[{P}:{P+1}]")
            g.I("s_cmp_eq_u64 vcc, 0")
        self.wvm(tk_st)
        scmp()
        g.I(f"s_cbranch_scc1 {dn}")
        g.I(f"s_mov_b32 s{T[1]}, 0")
        g.L(lp)
        g.raw(f"buffer_load_dwordx4 v[{xt[0]}:{xt[0]+3}], v{vo2}, s[{self.rWS}:{self.rWS+3}], s{sSt[0]} offen sc1")
        g.raw(f"buffer_load_dwordx4 v[{xt[1]}:{xt[1]+3}], v{vo2}, s[{self.rWS}:{self.rWS+3}], s{sSt[1]} offen sc1")
        g.I("s_waitcnt vmcnt(0)")
        scmp()
        g.M(f"""
        s_cbranch_scc1 {dn}
        s_add_u32 s{T[1]}, s{T[1]}, 1
        s_cmp_gt_u32 s{T[1]}, {SPIN}
        s_cbranch_scc1 {dn}
        s_branch {lp}
        """)
        g.L(dn)
        I(f"ds_write_b128 v{sw}, v[{xt[0]}:{xt[0]+3}]")
        I(f"ds_write_b128 v{sw}, v[{xt[1]}:{xt[1]+3}] offset:1024")
        sv = [v.alloc(2, 2) for _ in range(4)]; xv = [v.alloc(2, 2) for _ in range(4)]
        cL = self.sP2
        rs2 = v.alloc(2, 2)
        self.wvm(tk_rs)
        I(f"v_mov_b32 v{rs2}, v{rsv+1}")
        g.wait_lg_all()
        g.barrier()
        self.stamp("red")
        M(f"""
        s_mov_b32 s{cL}, {hx(-LOG2E)}
        s_mov_b32 s{cL+1}, {hx(-LOG2E)}
        """)
        pr = [acc[1], acc[2], acc[3]]
        tq = []
        for q in range(4):
            for k in range(3): I(f"ds_read_b128 v[{pr[k]+4*q}:{pr[k]+4*q+3}], v{ra} offset:{k*4096 + q*1024}")
            I(f"ds_read_b64_tr_b16 v[{sv[q]}:{sv[q]+1}], v{sa} offset:{q*1024}")
            tq.append(I(f"ds_read_b64 v[{xv[q]}:{xv[q]+1}], v{xq[q]}"))
        o = acc[0]
        e = v.alloc(8, 2); u4 = v.alloc(8, 2); x4 = v.alloc(8, 2); ob = v.alloc(4, 2)
        for qp in range(2):
            z = o + 8 * qp
            g.wait_lg(tq[2 * qp + 1])
            for k in range(3):
                for h_ in range(4): I(f"v_pk_add_f32 v[{z+2*h_}:{z+2*h_+1}], v[{z+2*h_}:{z+2*h_+1}], v[{pr[k]+8*qp+2*h_}:{pr[k]+8*qp+2*h_+1}]")
            for h_ in range(4): I(f"v_pk_mul_f32 v[{z+2*h_}:{z+2*h_+1}], v[{z+2*h_}:{z+2*h_+1}], v[{rs2}:{rs2+1}] op_sel_hi:[1,0]")
            for h_ in range(4): I(f"v_pk_mul_f32 v[{e+2*h_}:{e+2*h_+1}], v[{z+2*h_}:{z+2*h_+1}], s[{cL}:{cL+1}]")
            for h_ in range(8): I(f"v_exp_f32 v{e+h_}, v{e+h_}")
            for qq in range(2):
                q = 2 * qp + qq
                I(f"v_lshlrev_b32 v{u4+4*qq}, 16, v{sv[q]}"); I(f"v_and_b32 v{u4+4*qq+1}, 0xffff0000, v{sv[q]}")
                I(f"v_lshlrev_b32 v{u4+4*qq+2}, 16, v{sv[q]+1}"); I(f"v_and_b32 v{u4+4*qq+3}, 0xffff0000, v{sv[q]+1}")
            for h_ in range(4): I(f"v_pk_add_f32 v[{e+2*h_}:{e+2*h_+1}], v[{e+2*h_}:{e+2*h_+1}], 1.0 op_sel_hi:[1,0]")
            for h_ in range(8): I(f"v_rcp_f32 v{e+h_}, v{e+h_}")
            for qq in range(2):
                q = 2 * qp + qq
                I(f"v_lshlrev_b32 v{x4+4*qq}, 16, v{xv[q]}"); I(f"v_and_b32 v{x4+4*qq+1}, 0xffff0000, v{xv[q]}")
                I(f"v_lshlrev_b32 v{x4+4*qq+2}, 16, v{xv[q]+1}"); I(f"v_and_b32 v{x4+4*qq+3}, 0xffff0000, v{xv[q]+1}")
            for h_ in range(4): I(f"v_pk_mul_f32 v[{z+2*h_}:{z+2*h_+1}], v[{z+2*h_}:{z+2*h_+1}], v[{e+2*h_}:{e+2*h_+1}]")
            for h_ in range(4): I(f"v_pk_fma_f32 v[{z+2*h_}:{z+2*h_+1}], v[{z+2*h_}:{z+2*h_+1}], v[{u4+2*h_}:{u4+2*h_+1}], v[{x4+2*h_}:{x4+2*h_+1}]")
            for h_ in range(4): I(f"v_cvt_pk_bf16_f32 v{ob+h_}, v{z+2*h_}, v{z+2*h_+1}")
            for qq in range(2): I(f"ds_write_b64 v{xq[2*qp+qq]}, v[{ob+2*qq}:{ob+2*qq+1}]")
        g.wait_lg_all()
        g.barrier()
        for e_ in range(2): I(f"ds_read_b128 v[{xt[e_]}:{xt[e_]+3}], v{xw[e_]}")
        I(f"s_add_u32 s{T[0]}, s{sXo}, 8192")
        g.wait_lg_all()
        I(f"buffer_store_dwordx4 v[{xt[0]}:{xt[0]+3}], v{vo}, s[{self.rOut}:{self.rOut+3}], s{sXo} offen")
        I(f"buffer_store_dwordx4 v[{xt[1]}:{xt[1]+3}], v{vo}, s[{self.rOut}:{self.rOut+3}], s{T[0]} offen")

def wrap(body, lds=163840):
    hdr = open("cdna_kernels/" + NAME.replace("_kernel", "") + ".s.ref").read().split("; Override")[0]
    return hdr + f"""; @launch grid=(256,1,1) block=(256,1,1) lds={lds}
.amdgcn_target "amdgcn-amd-amdhsa--gfx950"
.text
.globl {NAME}
.p2align 8
.type {NAME},@function
{NAME}:
{body}
s_endpgm
.section .rodata,"a"
.p2align 6
.amdhsa_kernel {NAME}
  .amdhsa_next_free_vgpr 512
  .amdhsa_next_free_sgpr 102
  .amdhsa_accum_offset 256
  .amdhsa_group_segment_fixed_size 0
  .amdhsa_kernarg_size 120
  .amdhsa_user_sgpr_count 2
  .amdhsa_user_sgpr_kernarg_segment_ptr 1
  .amdhsa_system_sgpr_workgroup_id_x 1
  .amdhsa_float_denorm_mode_32 3
  .amdhsa_float_denorm_mode_16_64 3
.end_amdhsa_kernel
"""

if __name__ == "__main__":
    import json
    stop = sys.argv[1]
    out = sys.argv[2]
    prof = len(sys.argv) > 3 and sys.argv[3] == 'prof'
    opt = json.loads(sys.argv[4]) if len(sys.argv) > 4 else {}
    k = Kern(stop=None if stop == 'all' else stop, prof=prof, opt=opt)
    open(out, "w").write(wrap(k.build()))
    print("written", out, "max v", k.v.maxused, "max s", k.s.maxused, "s2", k.s2.maxused)
    if prof: print("stamps:", ",".join(k.stamps))
```
